```python
import torch

def _softmax(x, axis=-1):
    return torch.softmax(x, dim=axis)

def _gelu(x):
    return torch.nn.functional.gelu(x, approximate='tanh')

def _silu(x):
    return torch.nn.functional.silu(x)

def _sigmoid(x):
    return torch.sigmoid(x)

def _layernorm(x, axis=-1, eps=1e-05):
    m = x.mean(dim=axis, keepdim=True)
    v = x.var(dim=axis, keepdim=True, unbiased=False)
    return (x - m) / torch.sqrt(v + eps)

def _scatter_add(tgt, idx, src, axis=0):
    return tgt.clone().index_add_(axis, idx, src)

def _segment_sum(src, seg, n):
    out = torch.zeros((n,) + src.shape[1:], dtype=src.dtype)
    return out.index_add_(0, seg, src)

def _pad(x, pw):
    flat = tuple((v for pair in reversed(pw) for v in pair))
    return torch.nn.functional.pad(x, flat)
kernel_name = 'standalone__tree_speculative_verify_tree_attention_over_candidate_token_tree__decode'

def setup_inputs():

    _w = lambda a: (lambda t: t.to(torch.bfloat16) if t.is_floating_point() else t)(torch.as_tensor(a))
    B, Hq, Hkv, T, C, D = (1, 32, 32, 1, 8192, 192)
    tree_mask = torch.zeros((B, T, T), dtype=float)
    for b in range(B):
        parent = torch.zeros(T, dtype=torch.int64)
        for i in range(1, T):
            parent[i] = int(torch.randint(0, i, (1,)).item())
        for i in range(T):
            j = i
            tree_mask[b, i, j] = 1.0
            while j > 0:
                j = parent[j]
                tree_mask[b, i, j] = 1.0
    return {'q': _w((lambda *s: torch.randn(*s, dtype=torch.bfloat16) * 0.8)(B, Hq, T, D)), 'k_cache': _w((lambda *s: torch.randn(*s, dtype=torch.bfloat16) * 0.8)(B, Hkv, C, D)), 'v_cache': _w((lambda *s: torch.randn(*s, dtype=torch.bfloat16) * 0.05)(B, Hkv, C, D)), 'k_tree': _w((lambda *s: torch.randn(*s, dtype=torch.bfloat16) * 0.8)(B, Hkv, T, D)), 'v_tree': _w((lambda *s: torch.randn(*s, dtype=torch.bfloat16) * 0.05)(B, Hkv, T, D)), 'tree_mask': _w(tree_mask)}

def reference(q, k_cache, v_cache, k_tree, v_tree, tree_mask):
    B, Hq, T, D = q.shape
    Hkv, C = (k_cache.shape[1], k_cache.shape[2])
    rep = Hq // Hkv
    kc = (lambda x, n, axis: torch.repeat_interleave(x, n, dim=axis))(k_cache, rep, axis=1)
    vc = (lambda x, n, axis: torch.repeat_interleave(x, n, dim=axis))(v_cache, rep, axis=1)
    kt = (lambda x, n, axis: torch.repeat_interleave(x, n, dim=axis))(k_tree, rep, axis=1)
    vt = (lambda x, n, axis: torch.repeat_interleave(x, n, dim=axis))(v_tree, rep, axis=1)
    k = torch.concatenate([kc, kt], axis=2)
    v = torch.concatenate([vc, vt], axis=2)
    scale = D ** (-0.5)
    scores = torch.einsum('bhqd,bhkd->bhqk', q, k) * scale
    ctx_mask = torch.ones((B, 1, T, C), dtype=scores.dtype)
    tm = tree_mask[:, None, :, :].clone()
    full_mask = torch.concatenate([ctx_mask, tm], axis=-1)
    scores = scores + (1.0 - full_mask) * -1000000000.0
    p = _softmax(scores, axis=-1)
    return torch.einsum('bhqk,bhkd->bhqd', p, v)
```

```python
import struct, sys, math
NAME = "standalone__tree_speculative_verify_tree_attention_over_candidate_token_tree__decode"
HDR = open("cdna_kernels/%s.s.ref" % NAME).read().split("; Override launch")[0]

def f2h(x): return "0x%08x" % struct.unpack("<I", struct.pack("<f", x))[0]

def gen(NW=8, G=16, INTER=0, KF="nt", VF="nt", XCDMAP=0, PRIO=0):
    KEYS = NW*G*8
    NSPLIT = 8192//KEYS
    NWG = 32*NSPLIT
    WGB = KEYS*384
    C = (192**-0.5)*math.log2(math.e)
    NEG = -1e9*math.log2(math.e)
    o = []
    A = o.append
    A(HDR.rstrip("\n"))
    A("; Override launch geometry by editing the next line (default: block=256,")
    A("; @launch grid=(%d,1,1) block=(%d,1,1) lds=2048" % (NWG, NW*64))
    A('.amdgcn_target "amdgcn-amd-amdhsa--gfx950"')
    A(".text")
    A(".globl %s_kernel" % NAME)
    A(".p2align 8")
    A(".type %s_kernel,@function" % NAME)
    A("%s_kernel:" % NAME)
    vQ = 12; vS = 24; vMK = vS+G; vA = vMK+4; vKT = vA+8; vR = vKT+12
    vR = (vR+3)//4*4
    NV = vR + 12*G
    assert NV <= 256, NV
    A("    s_cmp_ge_u32 s2, %d" % NWG)
    A("    s_cbranch_scc1 L_end")
    A("    s_load_dwordx16 s[16:31], s[0:1], 0")
    A("    s_load_dwordx2 s[32:33], s[0:1], 64")
    A("    v_lshrrev_b32 v3, 6, v0")
    A("    v_and_b32 v0, 63, v0                    ; lane")
    A("    v_readfirstlane_b32 s4, v3              ; s4 = wave")
    if XCDMAP:
        A("    s_and_b32 s5, s2, 7")
        A("    s_lshr_b32 s6, s2, 3")
        A("    s_mul_i32 s5, s5, %d" % (NWG//8))
        A("    s_add_u32 s2, s5, s6")
    A("    s_lshr_b32 s5, s2, %d                    ; head" % int(math.log2(NSPLIT)))
    A("    s_and_b32 s6, s2, %d                     ; split" % (NSPLIT-1))
    A("    v_lshrrev_b32 v4, 3, v0                 ; lane/8")
    A("    v_and_b32 v5, 7, v0                     ; lane%8")
    A("    v_lshlrev_b32 v6, 4, v5                 ; (lane%8)*16")
    A("    s_movk_i32 s7, 384")
    A("    v_mad_u32_u24 v1, v4, s7, v6            ; (lane/8)*384 + (lane%8)*16")
    A("    s_mul_i32 s8, s2, %d" % WGB)
    wstride = 3072 if INTER else G*3072
    gstride = NW*3072 if INTER else 3072
    A("    s_mul_i32 s9, s4, %d" % wstride)
    A("    s_add_u32 s8, s8, s9")
    A("    v_add_u32 v1, s8, v1                    ; K/V voffset")
    A("    s_mul_i32 s9, s5, 384")
    A("    v_add_u32 v2, s9, v6")
    sOFF = 64
    for j in range(1, G):
        A("    s_mov_b32 s%d, %d" % (sOFF+j, j*gstride))
    for b, n in ((36, 100663296), (40, 100663296), (44, 12288), (48, 12288), (52, 12288), (56, 2)):
        A("    s_mov_b32 s%d, %d" % (b+2, n))
        A("    s_mov_b32 s%d, 0x20000" % (b+3))
    A("    s_waitcnt lgkmcnt(0)")
    A("    s_mov_b32 s44, s16")
    A("    s_mov_b32 s45, s17")
    A("    s_mov_b32 s36, s18")
    A("    s_mov_b32 s37, s19")
    A("    s_cmp_lg_u32 s4, 0")
    A("    s_cbranch_scc1 L_notree0")
    A("    s_mov_b32 s48, s22")
    A("    s_mov_b32 s49, s23")
    A("    s_mov_b32 s52, s24")
    A("    s_mov_b32 s53, s25")
    A("    s_mov_b32 s56, s26")
    A("    s_mov_b32 s57, s27")
    for i in range(3):
        A("    buffer_load_dwordx4 v[%d:%d], v2, s[48:51], 0 offen offset:%d" % (vKT+4*i, vKT+4*i+3, i*128))
    A("    v_lshlrev_b32 v7, 3, v0")
    A("    v_add_u32 v7, s9, v7")
    A("    buffer_load_dwordx2 v[10:11], v7, s[52:55], 0 offen")
    A("    v_mov_b32 v8, 0")
    A("    buffer_load_ushort v9, v8, s[56:59], 0 offen")
    A("    v_mov_b32 v4, 0")
    A("    v_mov_b32 v5, 0")
    A("    v_mov_b32 v6, 0")
    A("    v_mov_b32 v7, 0")
    A("    v_lshlrev_b32 v8, 4, v0")
    A("    ds_write_b128 v8, v[4:7]")
    A("L_notree0:")
    for i in range(3):
        A("    buffer_load_dwordx4 v[%d:%d], v2, s[44:47], 0 offen offset:%d" % (vQ+4*i, vQ+4*i+3, i*128))
    def so(j): return "0" if j == 0 else "s%d" % (sOFF+j)
    for j in range(G):
        for i in range(3):
            r = vR+12*j+4*i
            A("    buffer_load_dwordx4 v[%d:%d], v1, s[36:39], %s offen offset:%d %s" % (r, r+3, so(j), i*128, KF))
    A("    s_mov_b32 s40, s20")
    A("    s_mov_b32 s41, s21")
    A("    s_mov_b32 s10, %s                ; scale*log2(e)" % f2h(C))
    A("    v_and_b32 v5, 7, v0")
    A("    v_lshrrev_b32 v4, 1, v5                 ; jm/2")
    A("    v_and_b32 v5, 1, v5")
    A("    v_mov_b32 v6, 0xffff")
    A("    v_mov_b32 v7, 0xffff0000")
    A("    v_cmp_eq_u32 vcc, 1, v5")
    A("    v_mov_b32 v8, 0")
    A("    s_nop 0")
    A("    v_cndmask_b32 v6, v6, v7, vcc")
    for r in range(4):
        A("    v_cmp_eq_u32 vcc, %d, v4" % r)
        A("    s_nop 1")
        A("    v_cndmask_b32 v%d, v8, v6, vcc" % (vMK+r))
    for j in range(G):
        A("    s_waitcnt vmcnt(%d)" % (3*(G-1)))
        for i in range(3):
            for e in range(4):
                k = vR+12*j+4*i+e; q = vQ+4*i+e
                if i == 0 and e == 0:
                    A("    v_dot2_f32_bf16 v%d, v%d, v%d, 0" % (vS+j, k, q))
                    A("    s_nop 2")
                else:
                    A("    v_dot2c_f32_bf16 v%d, v%d, v%d" % (vS+j, k, q))
        for i in range(3):
            r = vR+12*j+4*i
            A("    buffer_load_dwordx4 v[%d:%d], v1, s[40:43], %s offen offset:%d %s" % (r, r+3, so(j), i*128, VF))
    A("    v_mov_b32 v3, %s" % f2h(-3e38))
    A("    s_cmp_lg_u32 s4, 0")
    A("    s_cbranch_scc1 L_notree1")
    A("    s_cmp_lg_u32 s6, 0")
    A("    s_cbranch_scc1 L_notree1")
    for i in range(3):
        for e in range(4):
            k = vKT+4*i+e; q = vQ+4*i+e
            if i == 0 and e == 0:
                A("    v_dot2_f32_bf16 v4, v%d, v%d, 0" % (k, q))
                A("    s_nop 2")
            else:
                A("    v_dot2c_f32_bf16 v4, v%d, v%d" % (k, q))
    A("    s_nop 2")
    for d in ("quad_perm:[1,0,3,2]", "quad_perm:[2,3,0,1]", "row_half_mirror"):
        A("    v_add_f32_dpp v4, v4, v4 %s row_mask:0xf bank_mask:0xf" % d)
        A("    s_nop 1")
    A("    v_lshlrev_b32 v9, 16, v9")
    A("    v_sub_f32 v9, 1.0, v9")
    A("    v_mov_b32 v5, %s" % f2h(NEG))
    A("    v_mul_f32 v9, v9, v5")
    A("    v_fma_f32 v3, v4, s10, v9")
    A("L_notree1:")
    A("    s_nop 2")
    for d in ("quad_perm:[1,0,3,2]", "quad_perm:[2,3,0,1]", "row_half_mirror"):
        for j in range(G):
            A("    v_add_f32_dpp v%d, v%d, v%d %s row_mask:0xf bank_mask:0xf" % (vS+j, vS+j, vS+j, d))
    A("    v_max3_f32 v4, v%d, v%d, v%d" % (vS, vS+1, vS+2))
    j = 3
    while j < G:
        if j+1 < G:
            A("    v_max3_f32 v4, v4, v%d, v%d" % (vS+j, vS+j+1)); j += 2
        else:
            A("    v_max_f32 v4, v4, v%d" % (vS+j)); j += 1
    A("    s_nop 1")
    A("    v_max_f32_dpp v4, v4, v4 row_ror:8 row_mask:0xf bank_mask:0xf")
    A("    s_nop 1")
    A("    v_max_f32_dpp v4, v4, v4 row_bcast:15 row_mask:0xa bank_mask:0xf")
    A("    s_nop 1")
    A("    v_max_f32_dpp v4, v4, v4 row_bcast:31 row_mask:0xc bank_mask:0xf")
    A("    s_nop 1")
    A("    v_readlane_b32 s11, v4, 63")
    A("    s_lshl_b32 s12, s4, 2")
    A("    s_add_u32 s12, s12, 1024")
    A("    v_mov_b32 v6, s12")
    A("    v_mul_f32 v5, s11, v_dummy" .replace("v_dummy", "v6") if False else "    v_mov_b32 v5, s11")
    A("    v_mul_f32 v5, s10, v5")
    A("    v_max_f32 v5, v5, v3")
    A("    ds_write_b32 v6, v5")
    A("    v_mov_b32 v6, 1024")
    A("    s_waitcnt lgkmcnt(0)")
    A("    s_barrier")
    tmp = vA
    for b in range(NW//4):
        A("    ds_read_b128 v[%d:%d], v6 offset:%d" % (tmp+4*(b%2), tmp+4*(b%2)+3, 16*b))
        if b % 2 == 1 or b == NW//4-1:
            A("    s_waitcnt lgkmcnt(0)")
            n = 8 if b % 2 == 1 else 4
            first = (b < 2)
            regs = list(range(tmp, tmp+n))
            if first:
                A("    v_max3_f32 v4, v%d, v%d, v%d" % (regs[0], regs[1], regs[2])); regs = regs[3:]
            while regs:
                if len(regs) >= 2:
                    A("    v_max3_f32 v4, v4, v%d, v%d" % (regs[0], regs[1])); regs = regs[2:]
                else:
                    A("    v_max_f32 v4, v4, v%d" % regs[0]); regs = regs[1:]
    for j in range(G):
        A("    v_fma_f32 v%d, v%d, s10, -v4" % (vS+j, vS+j))
    for j in range(G):
        A("    v_exp_f32 v%d, v%d" % (vS+j, vS+j))
    A("    v_sub_f32 v3, v3, v4")
    A("    v_exp_f32 v3, v3")
    A("    v_add_f32 v5, v%d, v%d" % (vS, vS+1))
    for j in range(2, G):
        A("    v_add_f32 v5, v5, v%d" % (vS+j))
    for j in range(G):
        A("    v_cvt_pk_bf16_f32 v%d, v%d, v%d" % (vS+j, vS+j, vS+j))
    A("    v_mov_b32 v6, 768")
    A("    s_mov_b32 exec_lo, 0x01010101")
    A("    s_mov_b32 exec_hi, 0x01010101")
    A("    ds_add_f32 v6, v5                       ; L += sum p")
    A("    s_mov_b64 exec, -1")
    A("    v_and_b32 v6, 7, v0")
    A("    v_lshlrev_b32 v6, 3, v6                 ; c*8")
    A("    v_bfe_u32 v7, v0, 4, 1")
    A("    v_lshl_add_u32 v6, v7, 2, v6            ; c*8 + (g'%2)*4")
    for j in range(G):
        a = vA + 4*(j % 2)
        for r in range(4):
            A("    v_and_b32 v%d, v%d, v%d" % (a+r, vS+j, vMK+r))
        A("    s_waitcnt vmcnt(%d)" % (3*(G-1-j)))
        A("    s_nop 0")
        for i in range(3):
            r = vR+12*j+4*i
            acc = vQ+4*i
            c = "0" if j == 0 else "v[%d:%d]" % (acc, acc+3)
            A("    v_mfma_f32_16x16x32_bf16 v[%d:%d], v[%d:%d], v[%d:%d], %s" % (acc, acc+3, a, a+3, r, r+3, c))
    A("    s_mov_b32 exec_lo, 0x00ff00ff")
    A("    s_mov_b32 exec_hi, 0xff00ff00")
    A("    s_nop 7")
    for i in range(3):
        for r in range(4):
            A("    ds_add_f32 v6, v%d offset:%d" % (vQ+4*i+r, (i*4+r)*64))
    A("    s_mov_b64 exec, -1")
    A("    s_waitcnt lgkmcnt(0)")
    A("    s_barrier")
    A("    s_cmp_lg_u32 s4, 0")
    A("    s_cbranch_scc1 L_end")
    A("    v_lshrrev_b32 v6, 4, v0")
    A("    v_lshlrev_b32 v6, 8, v6")
    A("    v_and_b32 v7, 15, v0")
    A("    v_lshl_add_u32 v6, v7, 2, v6            ; (t/16)*256 + (t%16)*4")
    A("    v_mov_b32 v7, 768")
    for r in range(4):
        A("    ds_read_b32 v%d, v6 offset:%d" % (12+r, r*64))
    A("    ds_read_b32 v16, v7")
    A("    s_mov_b32 s36, s32")
    A("    s_mov_b32 s37, s33")
    A("    s_mov_b32 s38, %d" % (NWG*1024))
    A("    s_mov_b32 s40, s30")
    A("    s_mov_b32 s41, s31")
    A("    s_mov_b32 s42, 256")
    A("    s_mov_b32 s44, s28")
    A("    s_mov_b32 s45, s29")
    A("    s_lshl_b32 s12, s2, 10")
    A("    v_lshlrev_b32 v8, 4, v0")
    A("    v_add_u32 v8, s12, v8")
    A("    v_lshlrev_b32 v18, 16, v10")
    A("    v_and_b32 v19, 0xffff0000, v10")
    A("    v_lshlrev_b32 v20, 16, v11")
    A("    v_and_b32 v21, 0xffff0000, v11")
    A("    s_cmp_lg_u32 s6, 0")
    A("    s_waitcnt lgkmcnt(0)")
    A("    s_cbranch_scc1 L_notree2")
    for r in range(4):
        A("    v_fma_f32 v%d, v3, v%d, v%d" % (12+r, 18+r, 12+r))
    A("    v_add_f32 v16, v16, v3")
    A("L_notree2:")
    A("    s_mov_b32 exec_lo, 0")
    A("    s_mov_b32 exec_hi, 0x10000              ; lane 48")
    A("    v_mov_b32 v12, v4")
    A("    v_mov_b32 v13, v16")
    A("    s_mov_b32 exec_lo, -1")
    A("    s_mov_b32 exec_hi, 0x1ffff")
    A("    buffer_store_dwordx4 v[12:15], v8, s[36:39], 0 offen sc1")
    A("    s_lshl_b32 s12, s5, 3")
    A("    v_mov_b32 v9, s12")
    A("    v_mov_b32 v17, 1")
    A("    s_waitcnt vmcnt(0)")
    A("    s_mov_b64 exec, 1")
    A("    buffer_atomic_add v17, v9, s[40:43], 0 offen sc0")
    A("    s_waitcnt vmcnt(0)")
    A("    v_readfirstlane_b32 s12, v17")
    A("    s_mov_b64 exec, -1")
    A("    s_cmp_lg_u32 s12, %d" % (NSPLIT-1))
    A("    s_cbranch_scc1 L_end")
    A("    s_lshl_b32 s12, s5, %d                   ; head*NSPLIT*1024" % (10+int(math.log2(NSPLIT))))
    A("    v_lshlrev_b32 v8, 4, v0")
    A("    v_add_u32 v8, s12, v8")
    A("    v_and_b32 v9, %d, v0" % (NSPLIT-1))
    A("    v_lshlrev_b32 v9, 10, v9")
    A("    v_add_u32 v9, s12, v9")
    A("    buffer_load_dwordx2 v[10:11], v9, s[36:39], 0 offen offset:768 sc1")
    for s in range(NSPLIT):
        A("    buffer_load_dwordx4 v[%d:%d], v8, s[36:39], 0 offen offset:%d sc1" % (vR+4*s, vR+4*s+3, 0) if s == 0 else
          "    buffer_load_dwordx4 v[%d:%d], v8, s[36:39], s%d offen sc1" % (vR+4*s, vR+4*s+3, 80+s))
        if s+1 < NSPLIT:
            A("    s_mov_b32 s%d, %d" % (80+s+1, (s+1)*1024))
    steps = ["quad_perm:[1,0,3,2]", "quad_perm:[2,3,0,1]", "row_half_mirror"]
    if NSPLIT >= 16: steps.append("row_ror:8")
    assert NSPLIT <= 16
    A("    s_waitcnt vmcnt(%d)" % NSPLIT)
    A("    v_mov_b32 v4, v10")
    for d in steps:
        A("    s_nop 1")
        A("    v_max_f32_dpp v4, v4, v4 %s row_mask:0xf bank_mask:0xf" % d)
    A("    v_sub_f32 v10, v10, v4")
    A("    v_exp_f32 v10, v10                      ; w_s")
    A("    s_nop 0")
    A("    v_mul_f32 v11, v10, v11                 ; w_s*L_s")
    for d in steps:
        A("    s_nop 1")
        A("    v_add_f32_dpp v11, v11, v11 %s row_mask:0xf bank_mask:0xf" % d)
    A("    v_rcp_f32 v11, v11")
    A("    s_nop 0")
    A("    v_mul_f32 v10, v10, v11                 ; w_s / L")
    A("    s_nop 0")
    for s in range(NSPLIT):
        A("    v_readlane_b32 s%d, v10, %d" % (64+s, s))
    A("    s_waitcnt vmcnt(0)")
    for r in range(4):
        A("    v_mul_f32 v%d, s64, v%d" % (12+r, vR+r))
    for s in range(1, NSPLIT):
        for r in range(4):
            A("    v_fma_f32 v%d, s%d, v%d, v%d" % (12+r, 64+s, vR+4*s+r, 12+r))
    A("    v_cvt_pk_bf16_f32 v12, v12, v13")
    A("    v_cvt_pk_bf16_f32 v13, v14, v15")
    A("    s_mul_i32 s12, s5, 384")
    A("    v_lshlrev_b32 v8, 3, v0")
    A("    v_add_u32 v8, s12, v8")
    A("    s_mov_b32 exec_lo, -1")
    A("    s_mov_b32 exec_hi, 0xffff               ; lanes 0..47")
    A("    buffer_store_dwordx2 v[12:13], v8, s[44:47], 0 offen")
    A("L_end:")
    A("    s_endpgm")
    A('.section .rodata,"a"')
    A(".p2align 6")
    A(".amdhsa_kernel %s_kernel" % NAME)
    A("  .amdhsa_next_free_vgpr %d" % NV)
    A("  .amdhsa_next_free_sgpr 102")
    A("  .amdhsa_accum_offset %d" % ((NV+3)//4*4))
    A("  .amdhsa_group_segment_fixed_size 0")
    A("  .amdhsa_kernarg_size 72")
    A("  .amdhsa_user_sgpr_count 2")
    A("  .amdhsa_user_sgpr_kernarg_segment_ptr 1")
    A("  .amdhsa_system_sgpr_workgroup_id_x 1")
    A(".end_amdhsa_kernel")
    return "\n".join(o) + "\n"

if __name__ == "__main__":
    out = sys.argv[1]
    kw = {}
    for a in sys.argv[2:]:
        k, v = a.split("=")
        kw[k] = int(v) if v.lstrip("-").isdigit() else v
    open(out, "w").write(gen(**kw))
```

```python
import struct, sys, math
NAME = "standalone__tree_speculative_verify_tree_attention_over_candidate_token_tree__decode"
HDR = open("cdna_kernels/%s.s.ref" % NAME).read().split("; Override launch")[0]
def f2h(x): return "0x%08x" % struct.unpack("<I", struct.pack("<f", x))[0]
DPP8 = ("quad_perm:[1,0,3,2]", "quad_perm:[2,3,0,1]", "row_half_mirror")

def gen(NW=8, NSPLIT=8, U=1, NB=2, INTER=1, KF="nt", VF="nt", STAMP=0, LDS=2048, PRIO=0):
    KEYS = 8192//NSPLIT
    NWG = 32*NSPLIT
    WGB = KEYS*384
    NCH = KEYS//(NW*U*8)
    assert NCH*NW*U*8 == KEYS
    C = (192**-0.5)*math.log2(math.e)
    NEGRAW = -1e9*math.sqrt(192.0)
    o = []
    A = o.append
    def stamp(i):
        if STAMP: A("    s_memrealtime s[%d:%d]" % (84+2*i, 85+2*i))
    A(HDR.rstrip("\n"))
    A("; Override launch geometry by editing the next line (default: block=256,")
    A("; @launch grid=(%d,1,1) block=(%d,1,1) lds=%d" % (NWG, NW*64, LDS))
    A('.amdgcn_target "amdgcn-amd-amdhsa--gfx950"')
    A(".text")
    A(".globl %s_kernel" % NAME)
    A(".p2align 8")
    A(".type %s_kernel,@function" % NAME)
    A("%s_kernel:" % NAME)
    vQ = 12; vACC = 24; vMK = 36; vA = 40; vS = 48; vKT = 52; vR = 64
    assert U <= 4
    NV = vR + NB*U*24
    assert NV <= 256, NV
    def kreg(b, u, i): return vR + b*U*24 + u*12 + 4*i
    def vreg(b, u, i): return vR + b*U*24 + U*12 + u*12 + 4*i
    BIG = 0x40000000
    cstride = U*3072*(NW if INTER else 1)
    wstride = U*3072 if INTER else NCH*U*3072
    A("    s_cmp_ge_u32 s2, %d" % NWG)
    A("    s_cbranch_scc1 L_end")
    if STAMP:
        for i in range(84, 100): A("    s_mov_b32 s%d, 0" % i)
    stamp(0)
    A("    s_load_dwordx16 s[16:31], s[0:1], 0")
    A("    s_load_dwordx2 s[32:33], s[0:1], 64")
    A("    v_lshrrev_b32 v3, 6, v0")
    A("    v_and_b32 v0, 63, v0                    ; lane")
    A("    v_readfirstlane_b32 s4, v3              ; s4 = wave")
    A("    s_lshr_b32 s5, s2, %d                    ; head" % int(math.log2(NSPLIT)))
    A("    s_and_b32 s6, s2, %d                     ; split" % (NSPLIT-1))
    A("    v_lshrrev_b32 v4, 3, v0                 ; lane/8")
    A("    v_and_b32 v5, 7, v0                     ; lane%8")
    A("    v_lshlrev_b32 v6, 4, v5                 ; (lane%8)*16")
    A("    s_movk_i32 s7, 384")
    A("    v_mad_u32_u24 v1, v4, s7, v6            ; (lane/8)*384 + (lane%8)*16")
    A("    s_mul_i32 s8, s2, %d" % WGB)
    A("    s_mul_i32 s9, s4, %d" % wstride)
    A("    s_add_u32 s8, s8, s9")
    A("    v_add_u32 v1, s8, v1                    ; K/V voffset")
    if U > 2: A("    v_add_u32 v2, 6144, v1")
    A("    s_mul_i32 s9, s5, 384")
    A("    v_add_u32 v7, s9, v6")
    for b, n in ((36, 100663296), (40, 100663296), (44, 12288), (48, 12288), (52, 12288), (56, 2)):
        A("    s_mov_b32 s%d, %d" % (b+2, n))
        A("    s_mov_b32 s%d, 0x20000" % (b+3))
    for b in range(NB):
        A("    s_mov_b32 s%d, %d" % (60+b, b*cstride if b < NCH else BIG))
    A("    s_mov_b32 s13, %d" % NB)
    A("    s_mov_b32 s14, %d" % (NB*cstride))
    A("    s_mov_b32 s10, %s                ; scale*log2(e)" % f2h(C))
    A("    s_waitcnt lgkmcnt(0)")
    A("    s_mov_b32 s44, s16")
    A("    s_mov_b32 s45, s17")
    A("    s_mov_b32 s36, s18")
    A("    s_mov_b32 s37, s19")
    A("    s_mov_b32 s40, s20")
    A("    s_mov_b32 s41, s21")
    for i in range(3):
        A("    buffer_load_dwordx4 v[%d:%d], v7, s[44:47], 0 offen offset:%d" % (vQ+4*i, vQ+4*i+3, i*128))
    A("    s_or_b32 s15, s4, s6")
    A("    s_cmp_lg_u32 s15, 0")
    A("    s_cbranch_scc1 L_notree0")
    A("    s_mov_b32 s48, s22")
    A("    s_mov_b32 s49, s23")
    A("    s_mov_b32 s52, s24")
    A("    s_mov_b32 s53, s25")
    A("    s_mov_b32 s56, s26")
    A("    s_mov_b32 s57, s27")
    for i in range(3):
        A("    buffer_load_dwordx4 v[%d:%d], v7, s[48:51], 0 offen offset:%d" % (vKT+4*i, vKT+4*i+3, i*128))
    A("    v_bfe_u32 v8, v0, 4, 1")
    A("    v_lshl_add_u32 v8, v8, 3, v7")
    for i in range(3):
        A("    buffer_load_dwordx2 v[%d:%d], v8, s[52:55], 0 offen offset:%d" % (vA+2*i, vA+2*i+1, i*128))
    A("    v_mov_b32 v8, 0")
    A("    buffer_load_ushort v9, v8, s[56:59], 0 offen")
    A("L_notree0:")
    def ldK(b):
        for u in range(U):
            for i in range(3):
                r = kreg(b, u, i)
                A("    buffer_load_dwordx4 v[%d:%d], %s, s[36:39], s%d offen offset:%d %s" % (r, r+3, "v1" if u < 2 else "v2", 60+b, (u % 2)*3072+i*128, KF))
    def ldV(b):
        for u in range(U):
            for i in range(3):
                r = vreg(b, u, i)
                A("    buffer_load_dwordx4 v[%d:%d], %s, s[40:43], s%d offen offset:%d %s" % (r, r+3, "v1" if u < 2 else "v2", 60+b, (u % 2)*3072+i*128, VF))
    for b in range(NB):
        ldK(b); ldV(b)
    A("    s_cmp_lg_u32 s4, 0")
    A("    s_cbranch_scc1 L_nozero")
    for r in range(4): A("    v_mov_b32 v%d, 0" % (vACC+r))
    A("    v_lshlrev_b32 v8, 4, v0")
    A("    ds_write_b128 v8, v[%d:%d]                ; zero o/L accumulators (1024 B)" % (vACC, vACC+3))
    A("L_nozero:")
    A("    v_and_b32 v5, 7, v0")
    A("    v_lshrrev_b32 v4, 1, v5                 ; jm/2")
    A("    v_and_b32 v5, 1, v5")
    A("    v_mov_b32 v6, 0xffff")
    A("    v_mov_b32 v8, 0xffff0000")
    A("    v_cmp_eq_u32 vcc, 1, v5")
    A("    v_mov_b32 v2, 0" if U <= 2 else "    s_nop 0")
    A("    v_mov_b32 v3, 0")
    A("    v_cndmask_b32 v6, v6, v8, vcc")
    for r in range(4):
        A("    v_cmp_eq_u32 vcc, %d, v4" % r)
        A("    s_nop 1")
        A("    v_cndmask_b32 v%d, v3, v6, vcc" % (vMK+r))
    for r in range(12): A("    v_mov_b32 v%d, 0" % (vACC+r))
    A("    v_mov_b32 v4, %s                 ; running max (raw)" % f2h(-3e38))
    A("    v_mov_b32 v5, 0                         ; l partial")
    W = 3*U*(2*NB-1)
    A("    s_cmp_lg_u32 s15, 0")
    A("    s_cbranch_scc1 L_notree1")
    A("    s_waitcnt vmcnt(%d)" % (6*U*NB))
    for i in range(3):
        for e in range(4):
            k = vKT+4*i+e; q = vQ+4*i+e
            if i == 0 and e == 0:
                A("    v_dot2_f32_bf16 v4, v%d, v%d, 0" % (k, q)); A("    s_nop 2")
            else:
                A("    v_dot2c_f32_bf16 v4, v%d, v%d" % (k, q))
    A("    s_nop 2")
    for d in DPP8:
        A("    v_add_f32_dpp v4, v4, v4 %s row_mask:0xf bank_mask:0xf" % d)
        A("    s_nop 1")
    A("    v_lshlrev_b32 v9, 16, v9")
    A("    v_sub_f32 v9, 1.0, v9")
    A("    v_mov_b32 v6, %s" % f2h(NEGRAW))
    A("    v_fma_f32 v4, v9, v6, v4")
    A("    s_mov_b32 exec_lo, 0xff")
    A("    s_mov_b32 exec_hi, 0")
    A("    v_mov_b32 v5, 1.0")
    A("    s_mov_b32 exec_lo, 0x00ff00ff")
    for i in range(3):
        A("    v_lshlrev_b32 v%d, 16, v%d" % (vACC+4*i, vA+2*i))
        A("    v_and_b32 v%d, 0xffff0000, v%d" % (vACC+4*i+1, vA+2*i))
        A("    v_lshlrev_b32 v%d, 16, v%d" % (vACC+4*i+2, vA+2*i+1))
        A("    v_and_b32 v%d, 0xffff0000, v%d" % (vACC+4*i+3, vA+2*i+1))
    A("    s_mov_b64 exec, -1")
    A("L_notree1:")
    if PRIO: A("    s_setprio %d" % PRIO)
    A("L_loop:")
    for b in range(NB):
        A("    s_cmp_eq_u32 s%d, %d" % (60+b, BIG))
        A("    s_cbranch_scc1 L_done")
        A("    s_waitcnt vmcnt(%d)" % W)
        if b == 0 and STAMP:
            A("    s_cmp_lg_u32 s86, 0"); A("    s_cbranch_scc1 L_ns1"); stamp(1); A("    s_waitcnt lgkmcnt(0)"); A("L_ns1:")
        for e12 in range(12):
            for u in range(U):
                i, e = divmod(e12, 4)
                k = kreg(b, u, i)+e; q = vQ+4*i+e
                if e12 == 0:
                    A("    v_dot2_f32_bf16 v%d, v%d, v%d, 0" % (vS+u, k, q))
                else:
                    A("    v_dot2c_f32_bf16 v%d, v%d, v%d" % (vS+u, k, q))
            if e12 == 0: A("    s_nop %d" % max(0, 3-U))
        A("    s_cmp_lt_u32 s13, %d" % NCH)
        A("    s_cselect_b32 s%d, s14, %d" % (60+b, BIG))
        A("    s_add_u32 s13, s13, 1")
        A("    s_add_u32 s14, s14, %d" % cstride)
        ldK(b)
        for d in DPP8:
            for u in range(U):
                A("    v_add_f32_dpp v%d, v%d, v%d %s row_mask:0xf bank_mask:0xf" % (vS+u, vS+u, vS+u, d))
            if U < 3: A("    s_nop %d" % (2-U))
        if U == 1:
            A("    v_cmp_gt_f32 vcc, v%d, v4" % vS)
        else:
            if U == 2: A("    v_max_f32 v6, v%d, v%d" % (vS, vS+1))
            elif U == 4:
                A("    v_max3_f32 v6, v%d, v%d, v%d" % (vS, vS+1, vS+2)); A("    v_max_f32 v6, v6, v%d" % (vS+3))
            A("    v_cmp_gt_f32 vcc, v6, v4")
        A("    s_cbranch_vccnz L_resc%d" % b)
        A("L_back%d:" % b)
        A("    v_mul_f32 v7, s10, v4")
        for u in range(U):
            A("    v_fma_f32 v%d, v%d, s10, -v7" % (vS+u, vS+u))
        for u in range(U):
            A("    v_exp_f32 v%d, v%d" % (vS+u, vS+u))
        A("    s_nop 0")
        for u in range(U):
            A("    v_add_f32 v5, v5, v%d" % (vS+u))
            A("    v_cvt_pk_bf16_f32 v%d, v%d, v%d" % (vS+u, vS+u, vS+u))
        for u in range(U):
            a = vA + 4*(u % 2)
            for r in range(4):
                A("    v_and_b32 v%d, v%d, v%d" % (a+r, vS+u, vMK+r))
            if u == 0: A("    s_waitcnt vmcnt(%d)" % W)
            else: A("    s_nop 0")
            A("    s_nop 0")
            for i in range(3):
                r = vreg(b, u, i); acc = vACC+4*i
                A("    v_mfma_f32_16x16x32_bf16 v[%d:%d], v[%d:%d], v[%d:%d], v[%d:%d]" % (acc, acc+3, a, a+3, r, r+3, acc, acc+3))
        ldV(b)
    A("    s_branch L_loop")
    for b in range(NB):
        A("L_resc%d:" % b)
        if U == 1: A("    v_max_f32 v6, v%d, v4" % vS)
        else: A("    v_max_f32 v6, v6, v4")
        A("    s_nop 1")
        A("    v_max_f32_dpp v6, v6, v6 row_ror:8 row_mask:0xf bank_mask:0xf")
        A("    s_nop 1")
        A("    v_max_f32_dpp v6, v6, v6 row_bcast:15 row_mask:0xa bank_mask:0xf")
        A("    s_nop 1")
        A("    v_max_f32_dpp v6, v6, v6 row_bcast:31 row_mask:0xc bank_mask:0xf")
        A("    s_nop 1")
        A("    v_readlane_b32 s11, v6, 63")
        A("    s_nop 1")
        A("    v_sub_f32 v7, v4, s11" if False else "    v_subrev_f32 v7, s11, v4")
        A("    v_mul_f32 v7, s10, v7")
        A("    v_exp_f32 v7, v7")
        A("    v_mov_b32 v4, s11")
        A("    s_nop 0")
        A("    v_mul_f32 v5, v5, v7")
        for r in range(12): A("    v_mul_f32 v%d, v%d, v7" % (vACC+r, vACC+r))
        A("    s_nop 1")
        A("    s_branch L_back%d" % b)
    A("L_done:")
    A("    s_waitcnt vmcnt(0)")
    stamp(2)
    A("    v_mul_f32 v4, s10, v4")
    A("    s_lshl_b32 s12, s4, 2")
    A("    s_add_u32 s12, s12, 1024")
    A("    v_mov_b32 v6, s12")
    A("    ds_write_b32 v6, v4")
    A("    v_mov_b32 v6, 1024")
    A("    s_waitcnt lgkmcnt(0)")
    A("    s_barrier")
    stamp(3)
    tmp = vA
    nrd = (NW+3)//4
    for b in range(nrd):
        A("    ds_read_b128 v[%d:%d], v6 offset:%d" % (vR+4*b, vR+4*b+3, 16*b))
    A("    v_and_b32 v6, 7, v0")
    A("    v_lshlrev_b32 v6, 3, v6                 ; c*8")
    A("    v_bfe_u32 v8, v0, 4, 1")
    A("    v_lshl_add_u32 v6, v8, 2, v6            ; c*8 + (g'%2)*4")
    A("    v_mov_b32 v8, 768")
    A("    s_waitcnt lgkmcnt(0)")
    regs = list(range(vR, vR+NW))
    A("    v_max3_f32 v7, v%d, v%d, v%d" % tuple(regs[:3])); regs = regs[3:]
    while regs:
        if len(regs) >= 2: A("    v_max3_f32 v7, v7, v%d, v%d" % tuple(regs[:2])); regs = regs[2:]
        else: A("    v_max_f32 v7, v7, v%d" % regs[0]); regs = regs[1:]
    A("    v_sub_f32 v4, v4, v7")
    A("    v_exp_f32 v4, v4")
    A("    s_nop 0")
    A("    v_mul_f32 v5, v5, v4")
    for r in range(12): A("    v_mul_f32 v%d, v%d, v4" % (vACC+r, vACC+r))
    A("    s_mov_b32 exec_lo, 0x00ff00ff")
    A("    s_mov_b32 exec_hi, 0xff00ff00")
    for i in range(3):
        for r in range(4):
            A("    ds_add_f32 v6, v%d offset:%d" % (vACC+4*i+r, (i*4+r)*64))
    A("    s_mov_b32 exec_lo, 0x01010101")
    A("    s_mov_b32 exec_hi, 0x01010101")
    A("    ds_add_f32 v8, v5                       ; L += sum p")
    A("    s_mov_b64 exec, -1")
    A("    s_waitcnt lgkmcnt(0)")
    A("    s_barrier")
    A("    s_cmp_lg_u32 s4, 0")
    A("    s_cbranch_scc1 L_end")
    stamp(5)
    A("    v_lshrrev_b32 v6, 4, v0")
    A("    v_lshlrev_b32 v6, 8, v6")
    A("    v_and_b32 v9, 15, v0")
    A("    v_lshl_add_u32 v6, v9, 2, v6            ; (t/16)*256 + (t%16)*4")
    for r in range(4):
        A("    ds_read_b32 v%d, v6 offset:%d" % (12+r, r*64))
    A("    ds_read_b32 v16, v8")
    A("    s_mov_b32 s36, s32")
    A("    s_mov_b32 s37, s33")
    A("    s_mov_b32 s38, %d" % (NWG*1024))
    A("    s_mov_b32 s40, s30")
    A("    s_mov_b32 s41, s31")
    A("    s_mov_b32 s42, 256")
    A("    s_mov_b32 s44, s28")
    A("    s_mov_b32 s45, s29")
    A("    s_lshl_b32 s12, s2, 10")
    A("    v_lshlrev_b32 v8, 4, v0")
    A("    v_add_u32 v8, s12, v8")
    A("    s_lshl_b32 s12, s5, 3")
    A("    v_mov_b32 v9, s12")
    A("    v_mov_b32 v17, 1")
    A("    s_waitcnt lgkmcnt(0)")
    A("    s_mov_b32 exec_lo, 0")
    A("    s_mov_b32 exec_hi, 0x10000              ; lane 48")
    A("    v_mov_b32 v12, v7")
    A("    v_mov_b32 v13, v16")
    A("    s_mov_b32 exec_lo, -1")
    A("    s_mov_b32 exec_hi, 0x1ffff")
    A("    buffer_store_dwordx4 v[12:15], v8, s[36:39], 0 offen sc1")
    A("    s_waitcnt vmcnt(0)")
    A("    s_mov_b64 exec, 1")
    A("    buffer_atomic_add v17, v9, s[40:43], 0 offen sc0")
    A("    s_waitcnt vmcnt(0)")
    A("    v_readfirstlane_b32 s12, v17")
    A("    s_mov_b64 exec, -1")
    stamp(6)
    A("    s_cmp_lg_u32 s12, %d" % (NSPLIT-1))
    A("    s_cbranch_scc1 %s" % ("L_stamp" if STAMP else "L_end"))
    A("    s_lshl_b32 s12, s5, %d                   ; head*NSPLIT*1024" % (10+int(math.log2(NSPLIT))))
    A("    v_lshlrev_b32 v8, 4, v0")
    A("    v_add_u32 v8, s12, v8")
    A("    v_and_b32 v9, %d, v0" % (NSPLIT-1))
    A("    v_lshlrev_b32 v9, 10, v9")
    A("    v_add_u32 v9, s12, v9")
    A("    buffer_load_dwordx2 v[10:11], v9, s[36:39], 0 offen offset:768 sc1")
    vF = 24
    for s in range(NSPLIT):
        if s == 0: A("    buffer_load_dwordx4 v[%d:%d], v8, s[36:39], 0 offen sc1" % (vF, vF+3))
        else: A("    buffer_load_dwordx4 v[%d:%d], v8, s[36:39], s%d offen sc1" % (vF+4*s, vF+4*s+3, 64+s))
        if s+1 < NSPLIT: A("    s_mov_b32 s%d, %d" % (64+s+1, (s+1)*1024))
    steps = list(DPP8)
    if NSPLIT >= 16: steps.append("row_ror:8")
    assert NSPLIT <= 16
    A("    s_waitcnt vmcnt(%d)" % NSPLIT)
    A("    v_mov_b32 v4, v10")
    for d in steps:
        A("    s_nop 1")
        A("    v_max_f32_dpp v4, v4, v4 %s row_mask:0xf bank_mask:0xf" % d)
    A("    v_sub_f32 v10, v10, v4")
    A("    v_exp_f32 v10, v10                      ; w_s")
    A("    s_nop 0")
    A("    v_mul_f32 v11, v10, v11                 ; w_s*L_s")
    for d in steps:
        A("    s_nop 1")
        A("    v_add_f32_dpp v11, v11, v11 %s row_mask:0xf bank_mask:0xf" % d)
    A("    v_rcp_f32 v11, v11")
    A("    s_nop 0")
    A("    v_mul_f32 v10, v10, v11                 ; w_s / L")
    A("    s_nop 0")
    for s in range(NSPLIT):
        A("    v_readlane_b32 s%d, v10, %d" % (64+s, s))
    A("    s_waitcnt vmcnt(0)")
    for r in range(4):
        A("    v_mul_f32 v%d, s64, v%d" % (12+r, vF+r))
    for s in range(1, NSPLIT):
        for r in range(4):
            A("    v_fma_f32 v%d, s%d, v%d, v%d" % (12+r, 64+s, vF+4*s+r, 12+r))
    A("    v_cvt_pk_bf16_f32 v12, v12, v13")
    A("    v_cvt_pk_bf16_f32 v13, v14, v15")
    A("    s_mul_i32 s12, s5, 384")
    A("    v_lshlrev_b32 v8, 3, v0")
    A("    v_add_u32 v8, s12, v8")
    A("    s_mov_b32 exec_lo, -1")
    A("    s_mov_b32 exec_hi, 0xffff               ; lanes 0..47")
    A("    buffer_store_dwordx2 v[12:13], v8, s[44:47], 0 offen")
    if STAMP:
        A("    s_waitcnt vmcnt(0)")
        stamp(7)
        A("L_stamp:")
        A("    s_mov_b64 exec, -1")
        A("    s_waitcnt lgkmcnt(0)")
        A("    s_mov_b32 s38, 0x200000")
        A("    s_lshl_b32 s12, s2, 6")
        A("    s_add_u32 s12, s12, 0x100000")
        A("    v_mov_b32 v8, s12")
        for i in range(4):
            for e in range(4): A("    v_mov_b32 v%d, s%d" % (12+e, 84+4*i+e))
            A("    buffer_store_dwordx4 v[12:15], v8, s[36:39], 0 offen offset:%d" % (16*i))
            A("    s_nop 1")
    A("L_end:")
    A("    s_endpgm")
    NV = max(NV, vF+4*NSPLIT)
    A('.section .rodata,"a"')
    A(".p2align 6")
    A(".amdhsa_kernel %s_kernel" % NAME)
    A("  .amdhsa_next_free_vgpr %d" % NV)
    A("  .amdhsa_next_free_sgpr 102")
    A("  .amdhsa_accum_offset %d" % ((NV+3)//4*4))
    A("  .amdhsa_group_segment_fixed_size 0")
    A("  .amdhsa_kernarg_size 72")
    A("  .amdhsa_user_sgpr_count 2")
    A("  .amdhsa_user_sgpr_kernarg_segment_ptr 1")
    A("  .amdhsa_system_sgpr_workgroup_id_x 1")
    A(".end_amdhsa_kernel")
    return "\n".join(o) + "\n"

if __name__ == "__main__":
    out = sys.argv[1]
    kw = {}
    for a in sys.argv[2:]:
        k, v = a.split("=")
        kw[k] = int(v) if v.lstrip("-").isdigit() else v
    open(out, "w").write(gen(**kw))
```

```python
import struct, sys, math
NAME = "standalone__tree_speculative_verify_tree_attention_over_candidate_token_tree__decode"
HDR = open("cdna_kernels/%s.s.ref" % NAME).read().split("; Override launch")[0]
def f2h(x): return "0x%08x" % struct.unpack("<I", struct.pack("<f", x))[0]
DPP8 = ("quad_perm:[1,0,3,2]", "quad_perm:[2,3,0,1]", "row_half_mirror")

def gen(NW=8, NSPLIT=8, U=1, NB=2, INTER=1, KF="nt", VF="nt", STAMP=0, LDS=32768, PRIO=0, DYN=0):
    KEYS = 8192//NSPLIT
    NWG = 32*NSPLIT
    WGB = KEYS*384
    NCH = KEYS//(NW*U*8)
    assert NCH*NW*U*8 == KEYS
    C = (192**-0.5)*math.log2(math.e)
    NEGRAW = -1e9*math.sqrt(192.0)
    o = []
    A = o.append
    def stamp(i):
        if STAMP: A("    s_memrealtime s[%d:%d]" % (84+2*i, 85+2*i))
    A(HDR.rstrip("\n"))
    A("; Override launch geometry by editing the next line (default: block=256,")
    A("; @launch grid=(%d,1,1) block=(%d,1,1) lds=%d" % (NWG, NW*64, LDS))
    A('.amdgcn_target "amdgcn-amd-amdhsa--gfx950"')
    A(".text")
    A(".globl %s_kernel" % NAME)
    A(".p2align 8")
    A(".type %s_kernel,@function" % NAME)
    A("%s_kernel:" % NAME)
    vQ = 12; vACC = 24; vMK = 36; vA = 40; vS = 48; vKT = 52; vR = 64
    assert U <= 4
    NV = vR + NB*U*24
    assert NV <= 256, NV
    def kreg(b, u, i): return vR + b*U*24 + u*12 + 4*i
    def vreg(b, u, i): return vR + b*U*24 + U*12 + u*12 + 4*i
    BIG = 0x40000000
    cstride = U*3072*(NW if INTER else 1)
    wstride = U*3072 if INTER else NCH*U*3072
    NCHT = KEYS//(U*8)
    if DYN:
        assert INTER
        wstride = 0
    A("    s_cmp_ge_u32 s2, %d" % NWG)
    A("    s_cbranch_scc1 L_end")
    if STAMP:
        for i in range(84, 100): A("    s_mov_b32 s%d, 0" % i)
    stamp(0)
    A("    s_load_dwordx16 s[16:31], s[0:1], 0")
    A("    s_load_dwordx2 s[32:33], s[0:1], 64")
    A("    v_lshrrev_b32 v3, 6, v0")
    A("    v_and_b32 v0, 63, v0                    ; lane")
    A("    v_readfirstlane_b32 s4, v3              ; s4 = wave")
    A("    s_lshr_b32 s5, s2, %d                    ; head" % int(math.log2(NSPLIT)))
    A("    s_and_b32 s6, s2, %d                     ; split" % (NSPLIT-1))
    A("    v_lshrrev_b32 v4, 3, v0                 ; lane/8")
    A("    v_and_b32 v5, 7, v0                     ; lane%8")
    A("    v_lshlrev_b32 v6, 4, v5                 ; (lane%8)*16")
    A("    s_movk_i32 s7, 384")
    A("    v_mad_u32_u24 v1, v4, s7, v6            ; (lane/8)*384 + (lane%8)*16")
    A("    s_mul_i32 s8, s2, %d" % WGB)
    A("    s_mul_i32 s9, s4, %d" % wstride)
    A("    s_add_u32 s8, s8, s9")
    A("    v_add_u32 v1, s8, v1                    ; K/V voffset")
    if U > 2: A("    v_add_u32 v2, 6144, v1")
    A("    s_mul_i32 s9, s5, 384")
    A("    v_add_u32 v7, s9, v6")
    for b, n in ((36, 100663296), (40, 100663296), (44, 12288), (48, 12288), (52, 12288), (56, 2)):
        A("    s_mov_b32 s%d, %d" % (b+2, n))
        A("    s_mov_b32 s%d, 0x20000" % (b+3))
    for b in range(NB):
        if DYN:
            A("    s_mul_i32 s%d, s4, %d" % (60+b, U*3072))
            A("    s_add_u32 s%d, s%d, %d" % (60+b, 60+b, b*cstride))
        else:
            A("    s_mov_b32 s%d, %d" % (60+b, b*cstride if b < NCH else BIG))
    A("    s_mov_b32 s13, %d" % NB)
    A("    s_mov_b32 s14, %d" % (NB*cstride))
    A("    s_mov_b32 s10, %s                ; scale*log2(e)" % f2h(C))
    if DYN:
        A("    v_mov_b32 v8, 1152")
        A("    v_mov_b32 v6, %d" % (NW*NB))
        A("    ds_write_b32 v8, v6")
    A("    s_waitcnt lgkmcnt(0)")
    if DYN: A("    s_barrier")
    A("    s_mov_b32 s44, s16")
    A("    s_mov_b32 s45, s17")
    A("    s_mov_b32 s36, s18")
    A("    s_mov_b32 s37, s19")
    A("    s_mov_b32 s40, s20")
    A("    s_mov_b32 s41, s21")
    for i in range(3):
        A("    buffer_load_dwordx4 v[%d:%d], v7, s[44:47], 0 offen offset:%d" % (vQ+4*i, vQ+4*i+3, i*128))
    A("    s_or_b32 s15, s4, s6")
    A("    s_cmp_lg_u32 s15, 0")
    A("    s_cbranch_scc1 L_notree0")
    A("    s_mov_b32 s48, s22")
    A("    s_mov_b32 s49, s23")
    A("    s_mov_b32 s52, s24")
    A("    s_mov_b32 s53, s25")
    A("    s_mov_b32 s56, s26")
    A("    s_mov_b32 s57, s27")
    for i in range(3):
        A("    buffer_load_dwordx4 v[%d:%d], v7, s[48:51], 0 offen offset:%d" % (vKT+4*i, vKT+4*i+3, i*128))
    A("    v_bfe_u32 v8, v0, 4, 1")
    A("    v_lshl_add_u32 v8, v8, 3, v7")
    for i in range(3):
        A("    buffer_load_dwordx2 v[%d:%d], v8, s[52:55], 0 offen offset:%d" % (vA+2*i, vA+2*i+1, i*128))
    A("    v_mov_b32 v8, 0")
    A("    buffer_load_ushort v9, v8, s[56:59], 0 offen")
    A("L_notree0:")
    def ldK(b):
        for u in range(U):
            for i in range(3):
                r = kreg(b, u, i)
                A("    buffer_load_dwordx4 v[%d:%d], %s, s[36:39], s%d offen offset:%d %s" % (r, r+3, "v1" if u < 2 else "v2", 60+b, (u % 2)*3072+i*128, KF))
    def ldV(b):
        for u in range(U):
            for i in range(3):
                r = vreg(b, u, i)
                A("    buffer_load_dwordx4 v[%d:%d], %s, s[40:43], s%d offen offset:%d %s" % (r, r+3, "v1" if u < 2 else "v2", 60+b, (u % 2)*3072+i*128, VF))
    for b in range(NB):
        ldK(b); ldV(b)
    if DYN:
        A("    v_mov_b32 v10, 1152")
        A("    v_mov_b32 v11, 1")
        A("    s_mov_b64 exec, 1")
        A("    ds_add_rtn_u32 v51, v10, v11")
        A("    s_mov_b64 exec, -1")
    A("    v_and_b32 v5, 7, v0")
    A("    v_lshrrev_b32 v4, 1, v5                 ; jm/2")
    A("    v_and_b32 v5, 1, v5")
    A("    v_mov_b32 v6, 0xffff")
    A("    v_mov_b32 v8, 0xffff0000")
    A("    v_cmp_eq_u32 vcc, 1, v5")
    A("    v_mov_b32 v2, 0" if U <= 2 else "    s_nop 0")
    A("    v_mov_b32 v3, 0")
    A("    v_cndmask_b32 v6, v6, v8, vcc")
    for r in range(4):
        A("    v_cmp_eq_u32 vcc, %d, v4" % r)
        A("    s_nop 1")
        A("    v_cndmask_b32 v%d, v3, v6, vcc" % (vMK+r))
    for r in range(12): A("    v_mov_b32 v%d, 0" % (vACC+r))
    A("    v_mov_b32 v4, %s                 ; running max (raw)" % f2h(-3e38))
    A("    v_mov_b32 v5, 0                         ; l partial")
    W = 3*U*(2*NB-1)
    A("    s_cmp_lg_u32 s15, 0")
    A("    s_cbranch_scc1 L_notree1")
    A("    s_waitcnt vmcnt(%d)" % (6*U*NB))
    for i in range(3):
        for e in range(4):
            k = vKT+4*i+e; q = vQ+4*i+e
            if i == 0 and e == 0:
                A("    v_dot2_f32_bf16 v4, v%d, v%d, 0" % (k, q)); A("    s_nop 2")
            else:
                A("    v_dot2c_f32_bf16 v4, v%d, v%d" % (k, q))
    A("    s_nop 2")
    for d in DPP8:
        A("    v_add_f32_dpp v4, v4, v4 %s row_mask:0xf bank_mask:0xf" % d)
        A("    s_nop 1")
    A("    v_lshlrev_b32 v9, 16, v9")
    A("    v_sub_f32 v9, 1.0, v9")
    A("    v_mov_b32 v6, %s" % f2h(NEGRAW))
    A("    v_fma_f32 v4, v9, v6, v4")
    A("    s_mov_b32 exec_lo, 0xff")
    A("    s_mov_b32 exec_hi, 0")
    A("    v_mov_b32 v5, 1.0")
    A("    s_mov_b32 exec_lo, 0x00ff00ff")
    for i in range(3):
        A("    v_lshlrev_b32 v%d, 16, v%d" % (vACC+4*i, vA+2*i))
        A("    v_and_b32 v%d, 0xffff0000, v%d" % (vACC+4*i+1, vA+2*i))
        A("    v_lshlrev_b32 v%d, 16, v%d" % (vACC+4*i+2, vA+2*i+1))
        A("    v_and_b32 v%d, 0xffff0000, v%d" % (vACC+4*i+3, vA+2*i+1))
    A("    s_mov_b64 exec, -1")
    A("L_notree1:")
    if PRIO: A("    s_setprio %d" % PRIO)
    A("L_loop:")
    for b in range(NB):
        A("    s_cmp_eq_u32 s%d, %d" % (60+b, BIG))
        A("    s_cbranch_scc1 L_done")
        A("    s_waitcnt vmcnt(%d)" % W)
        if b == 0 and STAMP:
            A("    s_cmp_lg_u32 s86, 0"); A("    s_cbranch_scc1 L_ns1"); stamp(1); A("    s_waitcnt lgkmcnt(0)"); A("L_ns1:")
        for e12 in range(12):
            for u in range(U):
                i, e = divmod(e12, 4)
                k = kreg(b, u, i)+e; q = vQ+4*i+e
                if e12 == 0:
                    A("    v_dot2_f32_bf16 v%d, v%d, v%d, 0" % (vS+u, k, q))
                else:
                    A("    v_dot2c_f32_bf16 v%d, v%d, v%d" % (vS+u, k, q))
            if e12 == 0: A("    s_nop %d" % max(0, 3-U))
        if DYN:
            A("    s_waitcnt lgkmcnt(0)")
            A("    v_readfirstlane_b32 s13, v51")
            A("    s_mov_b64 exec, 1")
            A("    ds_add_rtn_u32 v51, v10, v11")
            A("    s_mov_b64 exec, -1")
            A("    s_mul_i32 s14, s13, %d" % (U*3072))
            A("    s_cmp_lt_u32 s13, %d" % NCHT)
            A("    s_cselect_b32 s%d, s14, %d" % (60+b, BIG))
        else:
            A("    s_cmp_lt_u32 s13, %d" % NCH)
            A("    s_cselect_b32 s%d, s14, %d" % (60+b, BIG))
            A("    s_add_u32 s13, s13, 1")
            A("    s_add_u32 s14, s14, %d" % cstride)
        ldK(b)
        for d in DPP8:
            for u in range(U):
                A("    v_add_f32_dpp v%d, v%d, v%d %s row_mask:0xf bank_mask:0xf" % (vS+u, vS+u, vS+u, d))
            if U < 3: A("    s_nop %d" % (2-U))
        if U == 1:
            A("    v_cmp_gt_f32 vcc, v%d, v4" % vS)
        else:
            if U == 2: A("    v_max_f32 v6, v%d, v%d" % (vS, vS+1))
            elif U == 4:
                A("    v_max3_f32 v6, v%d, v%d, v%d" % (vS, vS+1, vS+2)); A("    v_max_f32 v6, v6, v%d" % (vS+3))
            A("    v_cmp_gt_f32 vcc, v6, v4")
        A("    s_cbranch_vccnz L_resc%d" % b)
        A("L_back%d:" % b)
        A("    v_mul_f32 v7, s10, v4")
        for u in range(U):
            A("    v_fma_f32 v%d, v%d, s10, -v7" % (vS+u, vS+u))
        for u in range(U):
            A("    v_exp_f32 v%d, v%d" % (vS+u, vS+u))
        A("    s_nop 0")
        for u in range(U):
            A("    v_add_f32 v5, v5, v%d" % (vS+u))
            A("    v_cvt_pk_bf16_f32 v%d, v%d, v%d" % (vS+u, vS+u, vS+u))
        for u in range(U):
            a = vA + 4*(u % 2)
            for r in range(4):
                A("    v_and_b32 v%d, v%d, v%d" % (a+r, vS+u, vMK+r))
            if u == 0: A("    s_waitcnt vmcnt(%d)" % W)
            else: A("    s_nop 0")
            A("    s_nop 0")
            for i in range(3):
                r = vreg(b, u, i); acc = vACC+4*i
                A("    v_mfma_f32_16x16x32_bf16 v[%d:%d], v[%d:%d], v[%d:%d], v[%d:%d]" % (acc, acc+3, a, a+3, r, r+3, acc, acc+3))
        ldV(b)
    A("    s_branch L_loop")
    for b in range(NB):
        A("L_resc%d:" % b)
        if U == 1: A("    v_max_f32 v6, v%d, v4" % vS)
        else: A("    v_max_f32 v6, v6, v4")
        A("    s_nop 1")
        A("    v_max_f32_dpp v6, v6, v6 row_ror:8 row_mask:0xf bank_mask:0xf")
        A("    s_nop 1")
        A("    v_max_f32_dpp v6, v6, v6 row_bcast:15 row_mask:0xa bank_mask:0xf")
        A("    s_nop 1")
        A("    v_max_f32_dpp v6, v6, v6 row_bcast:31 row_mask:0xc bank_mask:0xf")
        A("    s_nop 1")
        A("    v_readlane_b32 s11, v6, 63")
        A("    s_nop 1")
        A("    v_sub_f32 v7, v4, s11" if False else "    v_subrev_f32 v7, s11, v4")
        A("    v_mul_f32 v7, s10, v7")
        A("    v_exp_f32 v7, v7")
        A("    v_mov_b32 v4, s11")
        A("    s_nop 0")
        A("    v_mul_f32 v5, v5, v7")
        for r in range(12): A("    v_mul_f32 v%d, v%d, v7" % (vACC+r, vACC+r))
        A("    s_nop 1")
        A("    s_branch L_back%d" % b)
    A("L_done:")
    A("    s_waitcnt vmcnt(0) lgkmcnt(0)")
    stamp(2)
    A("    v_mul_f32 v4, s10, v4")
    A("    v_add_f32_dpp v5, v5, v5 row_ror:8 row_mask:0xf bank_mask:0xf")
    A("    v_bfe_u32 v6, v0, 4, 1                  ; g'%2")
    A("    v_and_b32 v8, 7, v0                     ; c")
    A("    v_add_f32_dpp v5, v5, v5 row_bcast:15 row_mask:0xa bank_mask:0xf")
    A("    v_lshlrev_b32 v6, 4, v6")
    A("    v_lshl_add_u32 v6, v8, 5, v6            ; c*32 + (g'%2)*16")
    A("    v_add_f32_dpp v5, v5, v5 row_bcast:31 row_mask:0xc bank_mask:0xf")
    A("    v_lshrrev_b32 v8, 5, v0                 ; h")
    A("    s_movk_i32 s12, 768")
    A("    v_mad_u32_u24 v6, v8, s12, v6")
    A("    s_mul_i32 s12, s4, 1536")
    A("    s_add_u32 s12, s12, 2048")
    A("    v_add_u32 v6, s12, v6")
    A("    v_readlane_b32 s11, v5, 63")
    A("    s_lshl_b32 s12, s4, 3")
    A("    s_add_u32 s12, s12, 1024")
    A("    v_mov_b32 v8, s12")
    A("    v_mov_b32 v5, s11")
    A("    s_mov_b32 exec_lo, 0x00ff00ff")
    A("    s_mov_b32 exec_hi, 0xff00ff00")
    for i in range(3):
        A("    ds_write_b128 v6, v[%d:%d] offset:%d" % (vACC+4*i, vACC+4*i+3, i*256))
    A("    ds_write_b64 v8, v[4:5]")
    A("    s_mov_b64 exec, -1")
    A("    s_waitcnt lgkmcnt(0)")
    A("    s_barrier")
    A("    s_cmp_lg_u32 s4, 0")
    A("    s_cbranch_scc1 L_end")
    stamp(3)
    A("    v_and_b32 v6, %d, v0" % (NW-1))
    A("    v_lshlrev_b32 v6, 3, v6")
    A("    v_lshlrev_b32 v8, 4, v0                 ; t*16")
    A("    ds_read_b64 v[10:11], v6 offset:1024")
    vM = 64 if NV >= 64+8*NW else 24
    NV = max(NV, vM+8*NW)
    for w in range(2*NW):
        A("    ds_read_b128 v[%d:%d], v8 offset:%d" % (vM+4*w, vM+4*w+3, 2048+w*768))
    msteps = list(DPP8[:min(3, int(math.log2(NW)))])
    if NW == 16: msteps.append("row_ror:8")
    A("    s_waitcnt lgkmcnt(%d)" % min(15, 2*NW))
    A("    v_mov_b32 v7, v10")
    for d in msteps:
        A("    s_nop 1")
        A("    v_max_f32_dpp v7, v7, v7 %s row_mask:0xf bank_mask:0xf" % d)
    A("    v_sub_f32 v10, v10, v7")
    A("    v_exp_f32 v10, v10")
    A("    s_nop 0")
    A("    v_mul_f32 v16, v10, v11")
    for d in msteps:
        A("    s_nop 1")
        A("    v_add_f32_dpp v16, v16, v16 %s row_mask:0xf bank_mask:0xf" % d)
    for w in range(NW):
        A("    v_readlane_b32 s%d, v10, %d" % (64+w, w))
    A("    s_waitcnt lgkmcnt(0)")
    for r in range(4):
        A("    v_mul_f32 v%d, s64, v%d" % (12+r, vM+r))
    for w in range(1, 2*NW):
        for r in range(4):
            A("    v_fma_f32 v%d, s%d, v%d, v%d" % (12+r, 64+w//2, vM+4*w+r, 12+r))
    stamp(5)
    A("    s_mov_b32 s36, s32")
    A("    s_mov_b32 s37, s33")
    A("    s_mov_b32 s38, %d" % (NWG*1024))
    A("    s_mov_b32 s40, s30")
    A("    s_mov_b32 s41, s31")
    A("    s_mov_b32 s42, 256")
    A("    s_mov_b32 s44, s28")
    A("    s_mov_b32 s45, s29")
    A("    s_lshl_b32 s12, s2, 10")
    A("    v_lshlrev_b32 v8, 4, v0")
    A("    v_add_u32 v8, s12, v8")
    A("    s_lshl_b32 s12, s5, 3")
    A("    v_mov_b32 v9, s12")
    A("    v_mov_b32 v17, 1")
    A("    s_waitcnt lgkmcnt(0)")
    A("    s_mov_b32 exec_lo, 0")
    A("    s_mov_b32 exec_hi, 0x10000              ; lane 48")
    A("    v_mov_b32 v12, v7")
    A("    v_mov_b32 v13, v16")
    A("    s_mov_b32 exec_lo, -1")
    A("    s_mov_b32 exec_hi, 0x1ffff")
    A("    buffer_store_dwordx4 v[12:15], v8, s[36:39], 0 offen sc1")
    A("    s_waitcnt vmcnt(0)")
    A("    s_mov_b64 exec, 1")
    A("    buffer_atomic_add v17, v9, s[40:43], 0 offen sc0")
    A("    s_waitcnt vmcnt(0)")
    A("    v_readfirstlane_b32 s12, v17")
    A("    s_mov_b64 exec, -1")
    stamp(6)
    A("    s_cmp_lg_u32 s12, %d" % (NSPLIT-1))
    A("    s_cbranch_scc1 %s" % ("L_stamp" if STAMP else "L_end"))
    A("    s_lshl_b32 s12, s5, %d                   ; head*NSPLIT*1024" % (10+int(math.log2(NSPLIT))))
    A("    v_lshlrev_b32 v8, 4, v0")
    A("    v_add_u32 v8, s12, v8")
    A("    v_and_b32 v9, %d, v0" % (NSPLIT-1))
    A("    v_lshlrev_b32 v9, 10, v9")
    A("    v_add_u32 v9, s12, v9")
    A("    buffer_load_dwordx2 v[10:11], v9, s[36:39], 0 offen offset:768 sc1")
    vF = 24
    for s in range(NSPLIT):
        if s == 0: A("    buffer_load_dwordx4 v[%d:%d], v8, s[36:39], 0 offen sc1" % (vF, vF+3))
        else: A("    buffer_load_dwordx4 v[%d:%d], v8, s[36:39], s%d offen sc1" % (vF+4*s, vF+4*s+3, 64+s))
        if s+1 < NSPLIT: A("    s_mov_b32 s%d, %d" % (64+s+1, (s+1)*1024))
    steps = list(DPP8)
    if NSPLIT >= 16: steps.append("row_ror:8")
    assert NSPLIT <= 16
    A("    s_waitcnt vmcnt(%d)" % NSPLIT)
    A("    v_mov_b32 v4, v10")
    for d in steps:
        A("    s_nop 1")
        A("    v_max_f32_dpp v4, v4, v4 %s row_mask:0xf bank_mask:0xf" % d)
    A("    v_sub_f32 v10, v10, v4")
    A("    v_exp_f32 v10, v10                      ; w_s")
    A("    s_nop 0")
    A("    v_mul_f32 v11, v10, v11                 ; w_s*L_s")
    for d in steps:
        A("    s_nop 1")
        A("    v_add_f32_dpp v11, v11, v11 %s row_mask:0xf bank_mask:0xf" % d)
    A("    v_rcp_f32 v11, v11")
    A("    s_nop 0")
    A("    v_mul_f32 v10, v10, v11                 ; w_s / L")
    A("    s_nop 0")
    for s in range(NSPLIT):
        A("    v_readlane_b32 s%d, v10, %d" % (64+s, s))
    A("    s_waitcnt vmcnt(0)")
    for r in range(4):
        A("    v_mul_f32 v%d, s64, v%d" % (12+r, vF+r))
    for s in range(1, NSPLIT):
        for r in range(4):
            A("    v_fma_f32 v%d, s%d, v%d, v%d" % (12+r, 64+s, vF+4*s+r, 12+r))
    A("    v_cvt_pk_bf16_f32 v12, v12, v13")
    A("    v_cvt_pk_bf16_f32 v13, v14, v15")
    A("    s_mul_i32 s12, s5, 384")
    A("    v_lshlrev_b32 v8, 3, v0")
    A("    v_add_u32 v8, s12, v8")
    A("    s_mov_b32 exec_lo, -1")
    A("    s_mov_b32 exec_hi, 0xffff               ; lanes 0..47")
    A("    buffer_store_dwordx2 v[12:13], v8, s[44:47], 0 offen")
    if STAMP:
        A("    s_waitcnt vmcnt(0)")
        stamp(7)
        A("L_stamp:")
        A("    s_mov_b64 exec, -1")
        A("    s_waitcnt lgkmcnt(0)")
        A("    s_mov_b32 s38, 0x200000")
        A("    s_lshl_b32 s12, s2, 6")
        A("    s_add_u32 s12, s12, 0x100000")
        A("    v_mov_b32 v8, s12")
        for i in range(4):
            for e in range(4): A("    v_mov_b32 v%d, s%d" % (12+e, 84+4*i+e))
            A("    buffer_store_dwordx4 v[12:15], v8, s[36:39], 0 offen offset:%d" % (16*i))
            A("    s_nop 1")
    A("L_end:")
    A("    s_endpgm")
    NV = max(NV, vF+4*NSPLIT)
    A('.section .rodata,"a"')
    A(".p2align 6")
    A(".amdhsa_kernel %s_kernel" % NAME)
    A("  .amdhsa_next_free_vgpr %d" % NV)
    A("  .amdhsa_next_free_sgpr 102")
    A("  .amdhsa_accum_offset %d" % ((NV+3)//4*4))
    A("  .amdhsa_group_segment_fixed_size 0")
    A("  .amdhsa_kernarg_size 72")
    A("  .amdhsa_user_sgpr_count 2")
    A("  .amdhsa_user_sgpr_kernarg_segment_ptr 1")
    A("  .amdhsa_system_sgpr_workgroup_id_x 1")
    A(".end_amdhsa_kernel")
    return "\n".join(o) + "\n"

if __name__ == "__main__":
    out = sys.argv[1]
    kw = {}
    for a in sys.argv[2:]:
        k, v = a.split("=")
        kw[k] = int(v) if v.lstrip("-").isdigit() else v
    open(out, "w").write(gen(**kw))
```

```python
import struct, sys, math
NAME = "standalone__tree_speculative_verify_tree_attention_over_candidate_token_tree__decode"
HDR = open("cdna_kernels/%s.s.ref" % NAME).read().split("; Override launch")[0]
def f2h(x): return "0x%08x" % struct.unpack("<I", struct.pack("<f", x))[0]
DPP8 = ("quad_perm:[1,0,3,2]", "quad_perm:[2,3,0,1]", "row_half_mirror")

def gen(NW=8, NSPLIT=8, U=1, NB=2, INTER=1, KF="nt", VF="nt", STAMP=0, LDS=32768, PRIO=0, DYN=0, XCDMAP=0, HI=0, GD=0, R0=26, CB=8, LOOK=4, X5=0, CSL=2, TG=0, CS=7, OF=""):
    KEYS = 8192//NSPLIT
    NWG = 32*NSPLIT
    WGB = KEYS*384
    NCH = KEYS//(NW*U*8)
    assert NCH*NW*U*8 == KEYS
    C = (192**-0.5)*math.log2(math.e)
    NEGRAW = -1e9*math.sqrt(192.0)
    if GD:
        assert DYN and HI and U == 1 and NSPLIT == 8 and NW == 4
    S = R0*NW
    POOL0 = R0*NW*NSPLIT
    NBLK = (1024//U - POOL0)//CB if GD else 0
    if GD: assert POOL0 + NBLK*CB == 1024 and NBLK*CB <= 256 and R0 >= NB
    NT = 256
    o = []
    A = o.append
    def stamp(i):
        if STAMP: A("    s_memrealtime s[%d:%d]" % (84+2*i, 85+2*i))
    A(HDR.rstrip("\n"))
    A("; Override launch geometry by editing the next line (default: block=256,")
    A("; @launch grid=(%d,1,1) block=(%d,1,1) lds=%d" % (NWG, (NW+(1 if (GD or X5) else 0))*64, LDS))
    A('.amdgcn_target "amdgcn-amd-amdhsa--gfx950"')
    A(".text")
    A(".globl %s_kernel" % NAME)
    A(".p2align 8")
    A(".type %s_kernel,@function" % NAME)
    A("%s_kernel:" % NAME)
    vQ = 12; vACC = 24; vMK = 36; vA = 40; vS = 48; vKT = 52; vR = 64
    assert U <= 4
    NV = vR + NB*U*24
    assert NV <= 256, NV
    def kreg(b, u, i): return vR + b*U*24 + u*12 + 4*i
    def vreg(b, u, i): return vR + b*U*24 + U*12 + u*12 + 4*i
    BIG = 0x40000000
    cstride = U*3072*(NW if INTER else 1)
    wstride = U*3072 if INTER else NCH*U*3072
    NCHT = KEYS//(U*8)
    if DYN:
        assert INTER
        wstride = 0
    A("    s_cmp_ge_u32 s2, %d" % NWG)
    A("    s_cbranch_scc1 L_end")
    if STAMP:
        for i in range(84, 100): A("    s_mov_b32 s%d, 0" % i)
    stamp(0)
    A("    s_load_dwordx16 s[16:31], s[0:1], 0")
    A("    s_load_dwordx2 s[32:33], s[0:1], 64")
    A("    v_lshrrev_b32 v3, 6, v0")
    A("    v_and_b32 v0, 63, v0                    ; lane")
    A("    v_readfirstlane_b32 s4, v3              ; s4 = wave")
    if X5:
        A("    s_cmp_eq_u32 s4, %d" % NW)
        A("    s_cbranch_scc1 L_end")
    if XCDMAP:
        A("    s_and_b32 s5, s2, 7")
        A("    s_lshr_b32 s6, s2, 3")
        A("    s_mul_i32 s5, s5, %d" % (NWG//8))
        A("    s_add_u32 s2, s5, s6")
    A("    s_lshr_b32 s5, s2, %d                    ; head" % int(math.log2(NSPLIT)))
    A("    s_and_b32 s6, s2, %d                     ; split" % (NSPLIT-1))
    A("    v_lshrrev_b32 v4, 3, v0                 ; lane/8")
    A("    v_and_b32 v5, 7, v0                     ; lane%8")
    A("    v_lshlrev_b32 v6, 4, v5                 ; (lane%8)*16")
    A("    s_movk_i32 s7, 384")
    A("    v_mad_u32_u24 v1, v4, s7, v6            ; (lane/8)*384 + (lane%8)*16")
    if HI:
        assert DYN
        A("    s_mul_i32 s8, s5, 3145728")
        A("    s_mul_i32 s34, s6, %d" % (NW*U*3072))
        if not GD: A("    s_add_u32 s8, s8, s34")
    else:
        A("    s_mul_i32 s8, s2, %d" % WGB)
    A("    s_mul_i32 s9, s4, %d" % wstride)
    A("    s_add_u32 s8, s8, s9")
    A("    v_add_u32 v1, s8, v1                    ; K/V voffset")
    if U > 2: A("    v_add_u32 v2, 6144, v1")
    A("    s_mul_i32 s9, s5, 384")
    A("    v_add_u32 v7, s9, v6")
    for b, n in ((36, 100663296), (40, 100663296), (44, 12288), (48, 12288), (52, 12288), (56, 2)):
        A("    s_mov_b32 s%d, %d" % (b+2, n))
        A("    s_mov_b32 s%d, 0x20000" % (b+3))
    for b in range(NB):
        if DYN:
            A("    s_mul_i32 s%d, s4, %d" % (60+b, U*3072))
            A("    s_add_u32 s%d, s%d, %d" % (60+b, 60+b, b*cstride*(NSPLIT if HI else 1)))
            if GD: A("    s_add_u32 s%d, s%d, s34" % (60+b, 60+b))
        else:
            A("    s_mov_b32 s%d, %d" % (60+b, b*cstride if b < NCH else BIG))
    A("    s_mov_b32 s13, %d" % NB)
    A("    s_mov_b32 s14, %d" % (NB*cstride))
    A("    s_mov_b32 s10, %s                ; scale*log2(e)" % f2h(C))
    if DYN:
        A("    v_mov_b32 v8, 1152")
        A("    v_mov_b32 v6, %d" % (NW*NB))
        A("    ds_write_b32 v8, v6")
        if GD:
            A("    s_lshl_b32 s12, s4, 8")
            A("    v_lshlrev_b32 v8, 2, v0")
            A("    v_add_u32 v8, s12, v8")
            A("    v_mov_b32 v6, -1")
            A("    ds_write_b32 v8, v6 offset:1280")
    A("    s_waitcnt lgkmcnt(0)")
    if DYN: A("    s_barrier")
    if STAMP:
        stamp(4); A("    s_waitcnt lgkmcnt(0)")
    if GD:
        A("    s_cmp_eq_u32 s4, %d" % NW)
        A("    s_cbranch_scc1 L_claimer")
    if TG:
        assert DYN and not GD and NSPLIT == 8
        A("    s_cmp_lg_u32 s4, %d" % (NW-1))
        A("    s_cbranch_scc1 L_noclr")
        A("    s_mov_b32 s48, s32")
        A("    s_mov_b32 s49, s33")
        A("    s_mov_b32 s50, %d" % (NWG*2048))
        A("    s_mov_b32 s52, s30")
        A("    s_mov_b32 s53, s31")
        A("    s_mov_b32 s54, 256")
        A("    s_lshl_b32 s12, s2, 11")
        A("    v_lshlrev_b32 v8, 4, v0")
        A("    v_add_u32 v8, s12, v8")
        for r in range(12, 16): A("    v_mov_b32 v%d, 0" % r)
        A("    buffer_store_dwordx4 v[12:15], v8, s[48:51], 0 offen sc1")
        A("    buffer_store_dwordx4 v[12:15], v8, s[48:51], 0 offen offset:1024 sc1")
        A("    s_nop 1")
        A("L_noclr:")
    A("    s_mov_b32 s44, s16")
    A("    s_mov_b32 s45, s17")
    A("    s_mov_b32 s36, s18")
    A("    s_mov_b32 s37, s19")
    A("    s_mov_b32 s40, s20")
    A("    s_mov_b32 s41, s21")
    for i in range(3):
        A("    buffer_load_dwordx4 v[%d:%d], v7, s[44:47], 0 offen offset:%d" % (vQ+4*i, vQ+4*i+3, i*128))
    A("    s_or_b32 s15, s4, s6")
    A("    s_cmp_lg_u32 s15, 0")
    A("    s_cbranch_scc1 L_notree0")
    A("    s_mov_b32 s48, s22")
    A("    s_mov_b32 s49, s23")
    A("    s_mov_b32 s52, s24")
    A("    s_mov_b32 s53, s25")
    A("    s_mov_b32 s56, s26")
    A("    s_mov_b32 s57, s27")
    for i in range(3):
        A("    buffer_load_dwordx4 v[%d:%d], v7, s[48:51], 0 offen offset:%d" % (vKT+4*i, vKT+4*i+3, i*128))
    A("    v_bfe_u32 v8, v0, 4, 1")
    A("    v_lshl_add_u32 v8, v8, 3, v7")
    for i in range(3):
        A("    buffer_load_dwordx2 v[%d:%d], v8, s[52:55], 0 offen offset:%d" % (vA+2*i, vA+2*i+1, i*128))
    A("    v_mov_b32 v8, 0")
    A("    buffer_load_ushort v9, v8, s[56:59], 0 offen")
    A("L_notree0:")
    def ldK(b):
        for u in range(U):
            for i in range(3):
                r = kreg(b, u, i)
                A("    buffer_load_dwordx4 v[%d:%d], %s, s[36:39], s%d offen offset:%d %s" % (r, r+3, "v1" if u < 2 else "v2", 60+b, (u % 2)*3072+i*128, KF))
    def ldV(b):
        for u in range(U):
            for i in range(3):
                r = vreg(b, u, i)
                A("    buffer_load_dwordx4 v[%d:%d], %s, s[40:43], s%d offen offset:%d %s" % (r, r+3, "v1" if u < 2 else "v2", 60+b, (u % 2)*3072+i*128, VF))
    for b in range(NB):
        ldK(b); ldV(b)
    if DYN:
        A("    v_mov_b32 v10, 1152")
        A("    v_mov_b32 v11, 1")
        A("    s_mov_b64 exec, 1")
        A("    ds_add_rtn_u32 v51, v10, v11")
        A("    s_mov_b64 exec, -1")
    A("    v_and_b32 v5, 7, v0")
    A("    v_lshrrev_b32 v4, 1, v5                 ; jm/2")
    A("    v_and_b32 v5, 1, v5")
    A("    v_mov_b32 v6, 0xffff")
    A("    v_mov_b32 v8, 0xffff0000")
    A("    v_cmp_eq_u32 vcc, 1, v5")
    A("    v_mov_b32 v2, 0" if U <= 2 else "    s_nop 0")
    A("    v_mov_b32 v3, 0")
    A("    v_cndmask_b32 v6, v6, v8, vcc")
    for r in range(4):
        A("    v_cmp_eq_u32 vcc, %d, v4" % r)
        A("    s_nop 1")
        A("    v_cndmask_b32 v%d, v3, v6, vcc" % (vMK+r))
    for r in range(12): A("    v_mov_b32 v%d, 0" % (vACC+r))
    A("    v_mov_b32 v4, %s                 ; running max (raw)" % f2h(-3e38))
    A("    v_mov_b32 v5, 0                         ; l partial")
    W = 3*U*(2*NB-1)
    A("    s_cmp_lg_u32 s15, 0")
    A("    s_cbranch_scc1 L_notree1")
    A("    s_waitcnt vmcnt(%d)" % (6*U*NB))
    for i in range(3):
        for e in range(4):
            k = vKT+4*i+e; q = vQ+4*i+e
            if i == 0 and e == 0:
                A("    v_dot2_f32_bf16 v4, v%d, v%d, 0" % (k, q)); A("    s_nop 2")
            else:
                A("    v_dot2c_f32_bf16 v4, v%d, v%d" % (k, q))
    A("    s_nop 2")
    for d in DPP8:
        A("    v_add_f32_dpp v4, v4, v4 %s row_mask:0xf bank_mask:0xf" % d)
        A("    s_nop 1")
    A("    v_lshlrev_b32 v9, 16, v9")
    A("    v_sub_f32 v9, 1.0, v9")
    A("    v_mov_b32 v6, %s" % f2h(NEGRAW))
    A("    v_fma_f32 v4, v9, v6, v4")
    A("    s_mov_b32 exec_lo, 0xff")
    A("    s_mov_b32 exec_hi, 0")
    A("    v_mov_b32 v5, 1.0")
    A("    s_mov_b32 exec_lo, 0x00ff00ff")
    for i in range(3):
        A("    v_lshlrev_b32 v%d, 16, v%d" % (vACC+4*i, vA+2*i))
        A("    v_and_b32 v%d, 0xffff0000, v%d" % (vACC+4*i+1, vA+2*i))
        A("    v_lshlrev_b32 v%d, 16, v%d" % (vACC+4*i+2, vA+2*i+1))
        A("    v_and_b32 v%d, 0xffff0000, v%d" % (vACC+4*i+3, vA+2*i+1))
    A("    s_mov_b64 exec, -1")
    A("L_notree1:")
    if TG:
        A("    s_cmp_lg_u32 s4, %d" % (NW-1))
        A("    s_cbranch_scc1 L_nosig")
        A("    s_lshl_b32 s12, s5, 3")
        A("    v_mov_b32 v8, s12")
        A("    v_mov_b32 v9, 1")
        A("    s_waitcnt vmcnt(0)")
        A("    s_mov_b64 exec, 1")
        A("    buffer_atomic_add v9, v8, s[52:55], 0 offen")
        A("    s_mov_b64 exec, -1")
        A("L_nosig:")
    if PRIO: A("    s_setprio %d" % PRIO)
    A("L_loop:")
    for b in range(NB):
        A("    s_cmp_eq_u32 s%d, %d" % (60+b, BIG))
        A("    s_cbranch_scc1 L_done")
        A("    s_waitcnt vmcnt(%d)" % W)
        if b == 0 and STAMP:
            A("    s_cmp_lg_u32 s86, 0"); A("    s_cbranch_scc1 L_ns1"); stamp(1); A("    s_waitcnt lgkmcnt(0)"); A("L_ns1:")
        for e12 in range(12):
            for u in range(U):
                i, e = divmod(e12, 4)
                k = kreg(b, u, i)+e; q = vQ+4*i+e
                if e12 == 0:
                    A("    v_dot2_f32_bf16 v%d, v%d, v%d, 0" % (vS+u, k, q))
                else:
                    A("    v_dot2c_f32_bf16 v%d, v%d, v%d" % (vS+u, k, q))
            if e12 == 0: A("    s_nop %d" % max(0, 3-U))
        if DYN:
            A("    s_waitcnt lgkmcnt(0)")
            A("    v_readfirstlane_b32 s13, v51")
            A("    s_mov_b64 exec, 1")
            A("    ds_add_rtn_u32 v51, v10, v11")
            A("    s_mov_b64 exec, -1")
            if GD:
                A("    s_cmp_ge_u32 s13, %d" % S)
                A("    s_cbranch_scc1 L_pool%d" % b)
            if HI:
                A("    s_lshr_b32 s14, s13, %d" % int(math.log2(NW)))
                A("    s_mul_i32 s14, s14, %d" % (NSPLIT*NW*U*3072))
                A("    s_and_b32 s12, s13, %d" % (NW-1))
                A("    s_mul_i32 s12, s12, %d" % (U*3072))
                A("    s_add_u32 s14, s14, s12")
            else:
                A("    s_mul_i32 s14, s13, %d" % (U*3072))
            if GD:
                A("    s_add_u32 s%d, s14, s34" % (60+b))
                A("L_poolback%d:" % b)
            else:
                A("    s_cmp_lt_u32 s13, %d" % NCHT)
                A("    s_cselect_b32 s%d, s14, %d" % (60+b, BIG))
        else:
            A("    s_cmp_lt_u32 s13, %d" % NCH)
            A("    s_cselect_b32 s%d, s14, %d" % (60+b, BIG))
            A("    s_add_u32 s13, s13, 1")
            A("    s_add_u32 s14, s14, %d" % cstride)
        ldK(b)
        for d in DPP8:
            for u in range(U):
                A("    v_add_f32_dpp v%d, v%d, v%d %s row_mask:0xf bank_mask:0xf" % (vS+u, vS+u, vS+u, d))
            if U < 3: A("    s_nop %d" % (2-U))
        if U == 1:
            A("    v_cmp_gt_f32 vcc, v%d, v4" % vS)
        else:
            if U == 2: A("    v_max_f32 v6, v%d, v%d" % (vS, vS+1))
            elif U == 4:
                A("    v_max3_f32 v6, v%d, v%d, v%d" % (vS, vS+1, vS+2)); A("    v_max_f32 v6, v6, v%d" % (vS+3))
            A("    v_cmp_gt_f32 vcc, v6, v4")
        A("    s_cbranch_vccnz L_resc%d" % b)
        A("L_back%d:" % b)
        A("    v_mul_f32 v7, s10, v4")
        for u in range(U):
            A("    v_fma_f32 v%d, v%d, s10, -v7" % (vS+u, vS+u))
        for u in range(U):
            A("    v_exp_f32 v%d, v%d" % (vS+u, vS+u))
        A("    s_nop 0")
        for u in range(U):
            A("    v_add_f32 v5, v5, v%d" % (vS+u))
            A("    v_cvt_pk_bf16_f32 v%d, v%d, v%d" % (vS+u, vS+u, vS+u))
        for u in range(U):
            a = vA + 4*(u % 2)
            for r in range(4):
                A("    v_and_b32 v%d, v%d, v%d" % (a+r, vS+u, vMK+r))
            if u == 0: A("    s_waitcnt vmcnt(%d)" % W)
            else: A("    s_nop 0")
            A("    s_nop 0")
            for i in range(3):
                r = vreg(b, u, i); acc = vACC+4*i
                A("    v_mfma_f32_16x16x32_bf16 v[%d:%d], v[%d:%d], v[%d:%d], v[%d:%d]" % (acc, acc+3, a, a+3, r, r+3, acc, acc+3))
        ldV(b)
    A("    s_branch L_loop")
    for b in range(NB):
        A("L_resc%d:" % b)
        if U == 1: A("    v_max_f32 v6, v%d, v4" % vS)
        else: A("    v_max_f32 v6, v6, v4")
        A("    s_nop 1")
        A("    v_max_f32_dpp v6, v6, v6 row_ror:8 row_mask:0xf bank_mask:0xf")
        A("    s_nop 1")
        A("    v_max_f32_dpp v6, v6, v6 row_bcast:15 row_mask:0xa bank_mask:0xf")
        A("    s_nop 1")
        A("    v_max_f32_dpp v6, v6, v6 row_bcast:31 row_mask:0xc bank_mask:0xf")
        A("    s_nop 1")
        A("    v_readlane_b32 s11, v6, 63")
        A("    s_nop 1")
        A("    v_sub_f32 v7, v4, s11" if False else "    v_subrev_f32 v7, s11, v4")
        A("    v_mul_f32 v7, s10, v7")
        A("    v_exp_f32 v7, v7")
        A("    v_mov_b32 v4, s11")
        A("    s_nop 0")
        A("    v_mul_f32 v5, v5, v7")
        for r in range(12): A("    v_mul_f32 v%d, v%d, v7" % (vACC+r, vACC+r))
        A("    s_nop 1")
        A("    s_branch L_back%d" % b)
    if GD:
        for b in range(NB):
            A("L_pool%d:" % b)
            A("    s_sub_u32 s12, s13, %d" % S)
            A("    s_mov_b32 s%d, %d" % (60+b, BIG))
            A("    s_cmp_ge_u32 s12, %d" % NT)
            A("    s_cbranch_scc1 L_poolback%d" % b)
            A("    s_lshl_b32 s12, s12, 2")
            A("    v_mov_b32 v6, s12")
            A("L_spin%d:" % b)
            A("    ds_read_b32 v7, v6 offset:1280")
            A("    s_waitcnt lgkmcnt(0)")
            A("    v_readfirstlane_b32 s12, v7")
            A("    s_nop 0")
            A("    s_mov_b32 s%d, s12" % (60+b))
            A("    s_cmp_lg_u32 s12, -1")
            A("    s_cbranch_scc1 L_poolback%d" % b)
            A("    s_sleep 1")
            A("    s_branch L_spin%d" % b)
        A("L_claimer:")
        A("    s_mov_b32 s40, s30")
        A("    s_mov_b32 s41, s31")
        A("    s_mov_b32 s42, 256")
        A("    s_lshl_b32 s12, s5, 3")
        A("    v_mov_b32 v9, s12")
        A("    v_mov_b32 v10, 1152")
        A("    v_mul_u32_u24 v11, 3072, v0             ; lane*3072")
        A("    v_lshlrev_b32 v12, 2, v0                ; lane*4")
        A("    s_mov_b32 s13, 0                        ; filled")
        A("L_cl_loop:")
        A("    ds_read_b32 v7, v10")
        A("    s_waitcnt lgkmcnt(0)")
        A("    v_readfirstlane_b32 s12, v7")
        A("    s_add_u32 s12, s12, %d" % LOOK)
        A("    s_add_u32 s14, s13, %d" % S)
        A("    s_cmp_gt_u32 s12, s14")
        A("    s_cbranch_scc1 L_cl_claim")
        A("    s_sleep %d" % CSL)
        A("    s_branch L_cl_loop")
        A("L_cl_claim:")
        A("    v_mov_b32 v17, 1")
        A("    s_mov_b64 exec, 1")
        A("    buffer_atomic_add v17, v9, s[40:43], 0 offen sc0")
        A("    s_waitcnt vmcnt(0)")
        A("    v_readfirstlane_b32 s12, v17")
        A("    s_mov_b64 exec, -1")
        A("    s_cmp_ge_u32 s12, %d" % NBLK)
        A("    s_cbranch_scc1 L_cl_fin")
        A("    s_mul_i32 s12, s12, %d" % (CB*3072))
        A("    s_add_u32 s12, s12, %d" % (POOL0*3072))
        A("    v_add_u32 v7, s12, v11")
        A("    s_lshl_b32 s14, s13, 2")
        A("    v_add_u32 v8, s14, v12")
        A("    s_mov_b64 exec, %d" % ((1 << CB)-1) if CB <= 6 else "    s_mov_b64 exec, 0x%x" % ((1 << CB)-1))
        A("    ds_write_b32 v8, v7 offset:1280")
        A("    s_mov_b64 exec, -1")
        A("    s_add_u32 s13, s13, %d" % CB)
        A("    s_branch L_cl_loop")
        A("L_cl_fin:")
        A("    v_mov_b32 v7, %d" % BIG)
        for q in range(NT//64):
            A("    v_add_u32 v8, %d, v0" % (q*64))
            A("    v_cmp_le_u32 vcc, s13, v8")
            A("    s_and_saveexec_b64 s[14:15], vcc")
            A("    v_lshlrev_b32 v8, 2, v8")
            A("    ds_write_b32 v8, v7 offset:1280")
            A("    s_mov_b64 exec, s[14:15]")
        A("    s_waitcnt lgkmcnt(0)")
        A("    s_endpgm")
    A("L_done:")
    A("    s_waitcnt vmcnt(0) lgkmcnt(0)")
    stamp(2)
    if TG:
        A("    s_mov_b32 s40, s30")
        A("    s_mov_b32 s41, s31")
        A("    s_mov_b32 s42, 256")
        A("    s_lshl_b32 s12, s5, 3")
        A("    v_mov_b32 v20, s12")
        A("    v_mov_b32 v21, 0")
        A("    s_cmp_lg_u32 s4, 0")
        A("    s_cbranch_scc1 L_nocnt")
        A("    s_cmp_lg_u32 s6, %d" % CS)
        A("    s_cbranch_scc1 L_nocnt")
        A("    buffer_load_dword v21, v20, s[40:43], 0 offen sc1")
        A("L_nocnt:")
    A("    v_mul_f32 v4, s10, v4")
    A("    v_add_f32_dpp v5, v5, v5 row_ror:8 row_mask:0xf bank_mask:0xf")
    A("    v_bfe_u32 v6, v0, 4, 1                  ; g'%2")
    A("    v_and_b32 v8, 7, v0                     ; c")
    A("    v_add_f32_dpp v5, v5, v5 row_bcast:15 row_mask:0xa bank_mask:0xf")
    A("    v_lshlrev_b32 v6, 4, v6")
    A("    v_lshl_add_u32 v6, v8, 5, v6            ; c*32 + (g'%2)*16")
    A("    v_add_f32_dpp v5, v5, v5 row_bcast:31 row_mask:0xc bank_mask:0xf")
    A("    v_lshrrev_b32 v8, 5, v0                 ; h")
    A("    s_movk_i32 s12, 768")
    A("    v_mad_u32_u24 v6, v8, s12, v6")
    A("    s_mul_i32 s12, s4, 1536")
    A("    s_add_u32 s12, s12, 2048")
    A("    v_add_u32 v6, s12, v6")
    A("    v_readlane_b32 s11, v5, 63")
    A("    s_lshl_b32 s12, s4, 3")
    A("    s_add_u32 s12, s12, 1024")
    A("    v_mov_b32 v8, s12")
    A("    v_mov_b32 v5, s11")
    A("    s_mov_b32 exec_lo, 0x00ff00ff")
    A("    s_mov_b32 exec_hi, 0xff00ff00")
    for i in range(3):
        A("    ds_write_b128 v6, v[%d:%d] offset:%d" % (vACC+4*i, vACC+4*i+3, i*256))
    A("    ds_write_b64 v8, v[4:5]")
    A("    s_mov_b64 exec, -1")
    A("    s_waitcnt lgkmcnt(0)")
    A("    s_barrier")
    A("    s_cmp_lg_u32 s4, 0")
    A("    s_cbranch_scc1 L_end")
    stamp(3)
    A("    v_and_b32 v6, %d, v0" % (NW-1))
    A("    v_lshlrev_b32 v6, 3, v6")
    A("    v_lshlrev_b32 v8, 4, v0                 ; t*16")
    A("    ds_read_b64 v[10:11], v6 offset:1024")
    vM = 64 if NV >= 64+8*NW else 24
    NV = max(NV, vM+8*NW)
    for w in range(2*NW):
        A("    ds_read_b128 v[%d:%d], v8 offset:%d" % (vM+4*w, vM+4*w+3, 2048+w*768))
    msteps = list(DPP8[:min(3, int(math.log2(NW)))])
    if NW == 16: msteps.append("row_ror:8")
    A("    s_waitcnt lgkmcnt(%d)" % min(15, 2*NW))
    A("    v_mov_b32 v7, v10")
    for d in msteps:
        A("    s_nop 1")
        A("    v_max_f32_dpp v7, v7, v7 %s row_mask:0xf bank_mask:0xf" % d)
    A("    v_sub_f32 v10, v10, v7")
    A("    v_exp_f32 v10, v10")
    A("    s_nop 0")
    A("    v_mul_f32 v16, v10, v11")
    for d in msteps:
        A("    s_nop 1")
        A("    v_add_f32_dpp v16, v16, v16 %s row_mask:0xf bank_mask:0xf" % d)
    for w in range(NW):
        A("    v_readlane_b32 s%d, v10, %d" % (64+w, w))
    A("    s_waitcnt lgkmcnt(0)")
    for r in range(4):
        A("    v_mul_f32 v%d, s64, v%d" % (12+r, vM+r))
    for w in range(1, 2*NW):
        for r in range(4):
            A("    v_fma_f32 v%d, s%d, v%d, v%d" % (12+r, 64+w//2, vM+4*w+r, 12+r))
    stamp(5)
    if TG:
        A("    s_mov_b32 s36, s32")
        A("    s_mov_b32 s37, s33")
        A("    s_mov_b32 s38, %d" % (NWG*2048))
        A("    s_mov_b32 s44, s28")
        A("    s_mov_b32 s45, s29")
        A("    s_lshl_b32 s12, s2, 11")
        A("    v_lshlrev_b32 v8, 4, v0")
        A("    v_add_u32 v8, s12, v8")
        A("    s_waitcnt lgkmcnt(0)")
        A("    s_mov_b32 exec_lo, 0")
        A("    s_mov_b32 exec_hi, 0x10000              ; lane 48")
        A("    v_mov_b32 v12, v7")
        A("    v_mov_b32 v13, v16")
        A("    s_mov_b32 exec_lo, -1")
        A("    s_mov_b32 exec_hi, 0x1ffff")
        for j in range(4):
            A("    v_mov_b32 v%d, v%d" % (28+2*j, 12+j))
            A("    v_mov_b32 v%d, 1.0                  ; tag" % (29+2*j))
        A("    buffer_store_dwordx4 v[28:31], v8, s[36:39], 0 offen sc1")
        A("    s_mov_b32 exec_hi, 0xffff")
        A("    buffer_store_dwordx4 v[32:35], v8, s[36:39], 0 offen offset:1024 sc1")
        if STAMP:
            A("    s_mov_b64 exec, -1")
        stamp(6)
        A("    s_cmp_lg_u32 s6, %d" % CS)
        A("    s_cbranch_scc1 %s" % ("L_stamp" if STAMP else "L_end"))
        A("    s_mov_b32 exec_lo, -1")
        A("    s_mov_b32 exec_hi, 0xffff               ; lanes 0..47")
        A("    s_lshl_b32 s12, s5, 14                  ; head*8*2048")
        A("    v_lshlrev_b32 v8, 4, v0")
        A("    v_add_u32 v8, s12, v8")
        A("    v_and_b32 v9, 7, v0")
        A("    v_lshlrev_b32 v9, 11, v9")
        A("    v_add_u32 v9, s12, v9")
        for q in range(1, 8): A("    s_mov_b32 s%d, %d" % (64+q, q*2048))
        A("    s_waitcnt vmcnt(2)")
        A("L_cspin:")
        A("    v_readfirstlane_b32 s12, v21")
        A("    s_cmp_eq_u32 s12, 8")
        A("    s_cbranch_scc1 L_poll")
        A("    buffer_load_dword v21, v20, s[40:43], 0 offen sc1")
        A("    s_waitcnt vmcnt(0)")
        A("    s_branch L_cspin")
        A("L_poll:")
        A("    buffer_load_dwordx4 v[10:13], v9, s[36:39], 0 offen offset:768 sc1")
        vF = 24
        for q in range(8):
            so = "0" if q == 0 else "s%d" % (64+q)
            A("    buffer_load_dwordx4 v[%d:%d], v8, s[36:39], %s offen sc1" % (vF+8*q, vF+8*q+3, so))
            A("    buffer_load_dwordx4 v[%d:%d], v8, s[36:39], %s offen offset:1024 sc1" % (vF+8*q+4, vF+8*q+7, so))
        A("    s_waitcnt vmcnt(16)")
        A("    v_min_u32 v16, v11, v13")
        A("    v_mov_b32 v11, v12")
        A("    v_mov_b32 v4, v10")
        for d in DPP8:
            A("    s_nop 1")
            A("    v_max_f32_dpp v4, v4, v4 %s row_mask:0xf bank_mask:0xf" % d)
        A("    v_sub_f32 v10, v10, v4")
        A("    v_exp_f32 v10, v10                      ; w_s")
        A("    s_nop 0")
        A("    v_mul_f32 v11, v10, v11                 ; w_s*L_s")
        for d in DPP8:
            A("    s_nop 1")
            A("    v_add_f32_dpp v11, v11, v11 %s row_mask:0xf bank_mask:0xf" % d)
        A("    v_rcp_f32 v11, v11")
        A("    s_nop 0")
        A("    v_mul_f32 v10, v10, v11                 ; w_s / L")
        for q in range(16):
            A("    s_waitcnt vmcnt(%d)" % (15-q))
            A("    v_min3_u32 v16, v16, v%d, v%d" % (vF+4*q+1, vF+4*q+3))
        A("    v_cmp_eq_u32 vcc, 0, v16")
        A("    s_cbranch_vccnz L_poll")
        for q in range(8):
            A("    v_readlane_b32 s%d, v10, %d" % (72+q, q))
        A("    s_nop 1")
        src = lambda q, r: vF + 8*q + (0, 2, 4, 6)[r]
        for r in range(4):
            A("    v_mul_f32 v%d, s72, v%d" % (12+r, src(0, r)))
        for q in range(1, 8):
            for r in range(4):
                A("    v_fma_f32 v%d, s%d, v%d, v%d" % (12+r, 72+q, src(q, r), 12+r))
    else:
        A("    s_mov_b32 s36, s32")
        A("    s_mov_b32 s37, s33")
        A("    s_mov_b32 s38, %d" % (NWG*1024))
        A("    s_mov_b32 s40, s30")
        A("    s_mov_b32 s41, s31")
        A("    s_mov_b32 s42, 256")
        A("    s_mov_b32 s44, s28")
        A("    s_mov_b32 s45, s29")
        A("    s_lshl_b32 s12, s2, 10")
        A("    v_lshlrev_b32 v8, 4, v0")
        A("    v_add_u32 v8, s12, v8")
        A("    s_lshl_b32 s12, s5, 3")
        if GD: A("    s_add_u32 s12, s12, 4")
        A("    v_mov_b32 v9, s12")
        A("    v_mov_b32 v17, 1")
        A("    s_waitcnt lgkmcnt(0)")
        A("    s_mov_b32 exec_lo, 0")
        A("    s_mov_b32 exec_hi, 0x10000              ; lane 48")
        A("    v_mov_b32 v12, v7")
        A("    v_mov_b32 v13, v16")
        A("    s_mov_b32 exec_lo, -1")
        A("    s_mov_b32 exec_hi, 0x1ffff")
        A("    buffer_store_dwordx4 v[12:15], v8, s[36:39], 0 offen sc1")
        A("    s_waitcnt vmcnt(0)")
        A("    s_mov_b64 exec, 1")
        A("    buffer_atomic_add v17, v9, s[40:43], 0 offen sc0")
        A("    s_waitcnt vmcnt(0)")
        A("    v_readfirstlane_b32 s12, v17")
        A("    s_mov_b64 exec, -1")
        stamp(6)
        A("    s_cmp_lg_u32 s12, %d" % (NSPLIT-1))
        A("    s_cbranch_scc1 %s" % ("L_stamp" if STAMP else "L_end"))
        A("    s_lshl_b32 s12, s5, %d                   ; head*NSPLIT*1024" % (10+int(math.log2(NSPLIT))))
        A("    v_lshlrev_b32 v8, 4, v0")
        A("    v_add_u32 v8, s12, v8")
        A("    v_and_b32 v9, %d, v0" % (NSPLIT-1))
        A("    v_lshlrev_b32 v9, 10, v9")
        A("    v_add_u32 v9, s12, v9")
        A("    buffer_load_dwordx2 v[10:11], v9, s[36:39], 0 offen offset:768 sc1")
        vF = 24
        for s in range(NSPLIT):
            if s == 0: A("    buffer_load_dwordx4 v[%d:%d], v8, s[36:39], 0 offen sc1" % (vF, vF+3))
            else: A("    buffer_load_dwordx4 v[%d:%d], v8, s[36:39], s%d offen sc1" % (vF+4*s, vF+4*s+3, 64+s))
            if s+1 < NSPLIT: A("    s_mov_b32 s%d, %d" % (64+s+1, (s+1)*1024))
        steps = list(DPP8)
        if NSPLIT >= 16: steps.append("row_ror:8")
        assert NSPLIT <= 16
        A("    s_waitcnt vmcnt(%d)" % NSPLIT)
        A("    v_mov_b32 v4, v10")
        for d in steps:
            A("    s_nop 1")
            A("    v_max_f32_dpp v4, v4, v4 %s row_mask:0xf bank_mask:0xf" % d)
        A("    v_sub_f32 v10, v10, v4")
        A("    v_exp_f32 v10, v10                      ; w_s")
        A("    s_nop 0")
        A("    v_mul_f32 v11, v10, v11                 ; w_s*L_s")
        for d in steps:
            A("    s_nop 1")
            A("    v_add_f32_dpp v11, v11, v11 %s row_mask:0xf bank_mask:0xf" % d)
        A("    v_rcp_f32 v11, v11")
        A("    s_nop 0")
        A("    v_mul_f32 v10, v10, v11                 ; w_s / L")
        A("    s_nop 0")
        for s in range(NSPLIT):
            A("    v_readlane_b32 s%d, v10, %d" % (64+s, s))
        A("    s_waitcnt vmcnt(0)")
        for r in range(4):
            A("    v_mul_f32 v%d, s64, v%d" % (12+r, vF+r))
        for s in range(1, NSPLIT):
            for r in range(4):
                A("    v_fma_f32 v%d, s%d, v%d, v%d" % (12+r, 64+s, vF+4*s+r, 12+r))
    A("    v_cvt_pk_bf16_f32 v12, v12, v13")
    A("    v_cvt_pk_bf16_f32 v13, v14, v15")
    A("    s_mul_i32 s12, s5, 384")
    A("    v_lshlrev_b32 v8, 3, v0")
    A("    v_add_u32 v8, s12, v8")
    A("    s_mov_b32 exec_lo, -1")
    A("    s_mov_b32 exec_hi, 0xffff               ; lanes 0..47")
    A(("    buffer_store_dwordx2 v[12:13], v8, s[44:47], 0 offen " + OF.replace("+", " ")).rstrip())
    if STAMP:
        A("    s_waitcnt vmcnt(0)")
        stamp(7)
        A("L_stamp:")
        A("    s_mov_b64 exec, -1")
        A("    s_waitcnt lgkmcnt(0)")
        A("    s_mov_b32 s38, 0x200000")
        A("    s_lshl_b32 s12, s2, 6")
        A("    s_add_u32 s12, s12, 0x100000")
        A("    v_mov_b32 v8, s12")
        for i in range(4):
            for e in range(4): A("    v_mov_b32 v%d, s%d" % (12+e, 84+4*i+e))
            A("    buffer_store_dwordx4 v[12:15], v8, s[36:39], 0 offen offset:%d" % (16*i))
            A("    s_nop 1")
    A("L_end:")
    A("    s_endpgm")
    NV = max(NV, vF+(8 if TG else 4)*NSPLIT)
    A('.section .rodata,"a"')
    A(".p2align 6")
    A(".amdhsa_kernel %s_kernel" % NAME)
    A("  .amdhsa_next_free_vgpr %d" % NV)
    A("  .amdhsa_next_free_sgpr 102")
    A("  .amdhsa_accum_offset %d" % ((NV+3)//4*4))
    A("  .amdhsa_group_segment_fixed_size 0")
    A("  .amdhsa_kernarg_size 72")
    A("  .amdhsa_user_sgpr_count 2")
    A("  .amdhsa_user_sgpr_kernarg_segment_ptr 1")
    A("  .amdhsa_system_sgpr_workgroup_id_x 1")
    A(".end_amdhsa_kernel")
    return "\n".join(o) + "\n"

if __name__ == "__main__":
    out = sys.argv[1]
    kw = {}
    for a in sys.argv[2:]:
        k, v = a.split("=")
        kw[k] = int(v) if v.lstrip("-").isdigit() else v
    open(out, "w").write(gen(**kw))
```

```python
import struct, sys, math
NAME = "standalone__tree_speculative_verify_tree_attention_over_candidate_token_tree__decode"
HDR = open("cdna_kernels/%s.s.ref" % NAME).read().split("; Override launch")[0]
def f2h(x): return "0x%08x" % struct.unpack("<I", struct.pack("<f", x))[0]
DPP8 = ("quad_perm:[1,0,3,2]", "quad_perm:[2,3,0,1]", "row_half_mirror")

def gen(NW=8, NSPLIT=8, U=1, NB=2, INTER=1, KF="nt", VF="nt", STAMP=0, LDS=32768, PRIO=0, DYN=0, XCDMAP=0, HI=0, GD=0, R0=26, CB=8, LOOK=4, X5=0, CSL=2, TG=0, CS=7, OF="", TW=0):
    KEYS = 8192//NSPLIT
    NWG = 32*NSPLIT
    WGB = KEYS*384
    NCH = KEYS//(NW*U*8)
    assert NCH*NW*U*8 == KEYS
    C = (192**-0.5)*math.log2(math.e)
    NEGRAW = -1e9*math.sqrt(192.0)
    if GD:
        assert DYN and HI and U == 1 and NSPLIT == 8 and NW == 4
    S = R0*NW
    POOL0 = R0*NW*NSPLIT
    NBLK = (1024//U - POOL0)//CB if GD else 0
    if GD: assert POOL0 + NBLK*CB == 1024 and NBLK*CB <= 256 and R0 >= NB
    NT = 256
    o = []
    A = o.append
    def stamp(i):
        if STAMP: A("    s_memrealtime s[%d:%d]" % (84+2*i, 85+2*i))
    A(HDR.rstrip("\n"))
    A("; Override launch geometry by editing the next line (default: block=256,")
    A("; @launch grid=(%d,1,1) block=(%d,1,1) lds=%d" % (NWG, (NW+(1 if (GD or X5) else 0))*64, LDS))
    A('.amdgcn_target "amdgcn-amd-amdhsa--gfx950"')
    A(".text")
    A(".globl %s_kernel" % NAME)
    A(".p2align 8")
    A(".type %s_kernel,@function" % NAME)
    A("%s_kernel:" % NAME)
    vQ = 12; vACC = 24; vMK = 36; vA = 40; vS = 48; vKT = 52; vR = 64
    assert U <= 4
    NV = vR + NB*U*24
    assert NV <= 256, NV
    def kreg(b, u, i): return vR + b*U*24 + u*12 + 4*i
    def vreg(b, u, i): return vR + b*U*24 + U*12 + u*12 + 4*i
    BIG = 0x40000000
    cstride = U*3072*(NW if INTER else 1)
    wstride = U*3072 if INTER else NCH*U*3072
    NCHT = KEYS//(U*8)
    if DYN:
        assert INTER
        wstride = 0
    A("    s_cmp_ge_u32 s2, %d" % NWG)
    A("    s_cbranch_scc1 L_end")
    if STAMP:
        for i in range(84, 100): A("    s_mov_b32 s%d, 0" % i)
    stamp(0)
    A("    s_load_dwordx16 s[16:31], s[0:1], 0")
    A("    s_load_dwordx2 s[32:33], s[0:1], 64")
    A("    v_lshrrev_b32 v3, 6, v0")
    A("    v_and_b32 v0, 63, v0                    ; lane")
    A("    v_readfirstlane_b32 s4, v3              ; s4 = wave")
    if X5:
        A("    s_cmp_eq_u32 s4, %d" % NW)
        A("    s_cbranch_scc1 L_end")
    if XCDMAP:
        A("    s_and_b32 s5, s2, 7")
        A("    s_lshr_b32 s6, s2, 3")
        A("    s_mul_i32 s5, s5, %d" % (NWG//8))
        A("    s_add_u32 s2, s5, s6")
    A("    s_lshr_b32 s5, s2, %d                    ; head" % int(math.log2(NSPLIT)))
    A("    s_and_b32 s6, s2, %d                     ; split" % (NSPLIT-1))
    A("    v_lshrrev_b32 v4, 3, v0                 ; lane/8")
    A("    v_and_b32 v5, 7, v0                     ; lane%8")
    A("    v_lshlrev_b32 v6, 4, v5                 ; (lane%8)*16")
    A("    s_movk_i32 s7, 384")
    A("    v_mad_u32_u24 v1, v4, s7, v6            ; (lane/8)*384 + (lane%8)*16")
    if HI:
        assert DYN
        A("    s_mul_i32 s8, s5, 3145728")
        A("    s_mul_i32 s34, s6, %d" % (NW*U*3072))
        if not GD: A("    s_add_u32 s8, s8, s34")
    else:
        A("    s_mul_i32 s8, s2, %d" % WGB)
    A("    s_mul_i32 s9, s4, %d" % wstride)
    A("    s_add_u32 s8, s8, s9")
    A("    v_add_u32 v1, s8, v1                    ; K/V voffset")
    if U > 2: A("    v_add_u32 v2, 6144, v1")
    A("    s_mul_i32 s9, s5, 384")
    A("    v_add_u32 v7, s9, v6")
    for b, n in ((36, 100663296), (40, 100663296), (44, 12288), (48, 12288), (52, 12288), (56, 2)):
        A("    s_mov_b32 s%d, %d" % (b+2, n))
        A("    s_mov_b32 s%d, 0x20000" % (b+3))
    for b in range(NB):
        if DYN:
            A("    s_mul_i32 s%d, s4, %d" % (60+b, U*3072))
            A("    s_add_u32 s%d, s%d, %d" % (60+b, 60+b, b*cstride*(NSPLIT if HI else 1)))
            if GD: A("    s_add_u32 s%d, s%d, s34" % (60+b, 60+b))
        else:
            A("    s_mov_b32 s%d, %d" % (60+b, b*cstride if b < NCH else BIG))
    A("    s_mov_b32 s13, %d" % NB)
    A("    s_mov_b32 s14, %d" % (NB*cstride))
    A("    s_mov_b32 s10, %s                ; scale*log2(e)" % f2h(C))
    if DYN:
        A("    v_mov_b32 v8, 1152")
        A("    v_mov_b32 v6, %d" % (NW*NB))
        A("    ds_write_b32 v8, v6")
        if GD:
            A("    s_lshl_b32 s12, s4, 8")
            A("    v_lshlrev_b32 v8, 2, v0")
            A("    v_add_u32 v8, s12, v8")
            A("    v_mov_b32 v6, -1")
            A("    ds_write_b32 v8, v6 offset:1280")
    A("    s_waitcnt lgkmcnt(0)")
    if DYN: A("    s_barrier")
    if STAMP:
        stamp(4); A("    s_waitcnt lgkmcnt(0)")
    if GD:
        A("    s_cmp_eq_u32 s4, %d" % NW)
        A("    s_cbranch_scc1 L_claimer")
    if TG:
        assert DYN and not GD and NSPLIT == 8
        A("    s_cmp_lg_u32 s4, %d" % (NW-1))
        A("    s_cbranch_scc1 L_noclr")
        A("    s_mov_b32 s48, s32")
        A("    s_mov_b32 s49, s33")
        A("    s_mov_b32 s50, %d" % (NWG*2048))
        A("    s_mov_b32 s52, s30")
        A("    s_mov_b32 s53, s31")
        A("    s_mov_b32 s54, 256")
        A("    s_lshl_b32 s12, s2, 11")
        A("    v_lshlrev_b32 v8, 4, v0")
        A("    v_add_u32 v8, s12, v8")
        for r in range(12, 16): A("    v_mov_b32 v%d, 0" % r)
        A("    buffer_store_dwordx4 v[12:15], v8, s[48:51], 0 offen sc1")
        A("    buffer_store_dwordx4 v[12:15], v8, s[48:51], 0 offen offset:1024 sc1")
        A("    s_nop 1")
        A("L_noclr:")
    if TW:
        A("    ; wave 1: touch the pages of the tail (out, hand-off record, arrival counter); values unused")
        A("    s_cmp_lg_u32 s4, 1")
        A("    s_cbranch_scc1 L_notw")
        A("    s_mov_b32 s48, s28")
        A("    s_mov_b32 s49, s29")
        A("    s_mov_b32 s52, s32")
        A("    s_mov_b32 s53, s33")
        A("    s_mov_b32 s54, %d" % (NWG*1024))
        A("    s_mov_b32 s56, s30")
        A("    s_mov_b32 s57, s31")
        A("    s_mov_b32 s58, 256")
        A("    s_lshl_b32 s12, s2, 10")
        A("    v_mov_b32 v8, s12")
        A("    s_lshl_b32 s12, s5, 3")
        A("    v_mov_b32 v9, s12")
        A("    s_mul_i32 s12, s5, 384")
        A("    v_mov_b32 v50, s12")
        A("    s_mov_b64 exec, 1")
        A("    buffer_load_dword v49, v50, s[48:51], 0 offen")
        A("    buffer_load_dword v49, v8, s[52:55], 0 offen sc1")
        A("    buffer_load_dword v49, v9, s[56:59], 0 offen sc1")
        A("    s_mov_b64 exec, -1")
        A("L_notw:")
    A("    s_mov_b32 s44, s16")
    A("    s_mov_b32 s45, s17")
    A("    s_mov_b32 s36, s18")
    A("    s_mov_b32 s37, s19")
    A("    s_mov_b32 s40, s20")
    A("    s_mov_b32 s41, s21")
    for i in range(3):
        A("    buffer_load_dwordx4 v[%d:%d], v7, s[44:47], 0 offen offset:%d" % (vQ+4*i, vQ+4*i+3, i*128))
    A("    s_or_b32 s15, s4, s6")
    A("    s_cmp_lg_u32 s15, 0")
    A("    s_cbranch_scc1 L_notree0")
    A("    s_mov_b32 s48, s22")
    A("    s_mov_b32 s49, s23")
    A("    s_mov_b32 s52, s24")
    A("    s_mov_b32 s53, s25")
    A("    s_mov_b32 s56, s26")
    A("    s_mov_b32 s57, s27")
    for i in range(3):
        A("    buffer_load_dwordx4 v[%d:%d], v7, s[48:51], 0 offen offset:%d" % (vKT+4*i, vKT+4*i+3, i*128))
    A("    v_bfe_u32 v8, v0, 4, 1")
    A("    v_lshl_add_u32 v8, v8, 3, v7")
    for i in range(3):
        A("    buffer_load_dwordx2 v[%d:%d], v8, s[52:55], 0 offen offset:%d" % (vA+2*i, vA+2*i+1, i*128))
    A("    v_mov_b32 v8, 0")
    A("    buffer_load_ushort v9, v8, s[56:59], 0 offen")
    A("L_notree0:")
    def ldK(b):
        for u in range(U):
            for i in range(3):
                r = kreg(b, u, i)
                A("    buffer_load_dwordx4 v[%d:%d], %s, s[36:39], s%d offen offset:%d %s" % (r, r+3, "v1" if u < 2 else "v2", 60+b, (u % 2)*3072+i*128, KF))
    def ldV(b):
        for u in range(U):
            for i in range(3):
                r = vreg(b, u, i)
                A("    buffer_load_dwordx4 v[%d:%d], %s, s[40:43], s%d offen offset:%d %s" % (r, r+3, "v1" if u < 2 else "v2", 60+b, (u % 2)*3072+i*128, VF))
    for b in range(NB):
        ldK(b); ldV(b)
    if DYN:
        A("    v_mov_b32 v10, 1152")
        A("    v_mov_b32 v11, 1")
        A("    s_mov_b64 exec, 1")
        A("    ds_add_rtn_u32 v51, v10, v11")
        A("    s_mov_b64 exec, -1")
    A("    v_and_b32 v5, 7, v0")
    A("    v_lshrrev_b32 v4, 1, v5                 ; jm/2")
    A("    v_and_b32 v5, 1, v5")
    A("    v_mov_b32 v6, 0xffff")
    A("    v_mov_b32 v8, 0xffff0000")
    A("    v_cmp_eq_u32 vcc, 1, v5")
    A("    v_mov_b32 v2, 0" if U <= 2 else "    s_nop 0")
    A("    v_mov_b32 v3, 0")
    A("    v_cndmask_b32 v6, v6, v8, vcc")
    for r in range(4):
        A("    v_cmp_eq_u32 vcc, %d, v4" % r)
        A("    s_nop 1")
        A("    v_cndmask_b32 v%d, v3, v6, vcc" % (vMK+r))
    for r in range(12): A("    v_mov_b32 v%d, 0" % (vACC+r))
    A("    v_mov_b32 v4, %s                 ; running max (raw)" % f2h(-3e38))
    A("    v_mov_b32 v5, 0                         ; l partial")
    W = 3*U*(2*NB-1)
    A("    s_cmp_lg_u32 s15, 0")
    A("    s_cbranch_scc1 L_notree1")
    A("    s_waitcnt vmcnt(%d)" % (6*U*NB))
    for i in range(3):
        for e in range(4):
            k = vKT+4*i+e; q = vQ+4*i+e
            if i == 0 and e == 0:
                A("    v_dot2_f32_bf16 v4, v%d, v%d, 0" % (k, q)); A("    s_nop 2")
            else:
                A("    v_dot2c_f32_bf16 v4, v%d, v%d" % (k, q))
    A("    s_nop 2")
    for d in DPP8:
        A("    v_add_f32_dpp v4, v4, v4 %s row_mask:0xf bank_mask:0xf" % d)
        A("    s_nop 1")
    A("    v_lshlrev_b32 v9, 16, v9")
    A("    v_sub_f32 v9, 1.0, v9")
    A("    v_mov_b32 v6, %s" % f2h(NEGRAW))
    A("    v_fma_f32 v4, v9, v6, v4")
    A("    s_mov_b32 exec_lo, 0xff")
    A("    s_mov_b32 exec_hi, 0")
    A("    v_mov_b32 v5, 1.0")
    A("    s_mov_b32 exec_lo, 0x00ff00ff")
    for i in range(3):
        A("    v_lshlrev_b32 v%d, 16, v%d" % (vACC+4*i, vA+2*i))
        A("    v_and_b32 v%d, 0xffff0000, v%d" % (vACC+4*i+1, vA+2*i))
        A("    v_lshlrev_b32 v%d, 16, v%d" % (vACC+4*i+2, vA+2*i+1))
        A("    v_and_b32 v%d, 0xffff0000, v%d" % (vACC+4*i+3, vA+2*i+1))
    A("    s_mov_b64 exec, -1")
    A("L_notree1:")
    if TG == 1:
        A("    s_cmp_lg_u32 s4, %d" % (NW-1))
        A("    s_cbranch_scc1 L_nosig")
        A("    s_lshl_b32 s12, s5, 3")
        A("    v_mov_b32 v8, s12")
        A("    v_mov_b32 v9, 1")
        A("    s_waitcnt vmcnt(0)")
        A("    s_mov_b64 exec, 1")
        A("    buffer_atomic_add v9, v8, s[52:55], 0 offen")
        A("    s_mov_b64 exec, -1")
        A("L_nosig:")
    if PRIO: A("    s_setprio %d" % PRIO)
    A("L_loop:")
    for b in range(NB):
        A("    s_cmp_eq_u32 s%d, %d" % (60+b, BIG))
        A("    s_cbranch_scc1 L_done")
        A("    s_waitcnt vmcnt(%d)" % W)
        if b == 0 and STAMP:
            A("    s_cmp_lg_u32 s86, 0"); A("    s_cbranch_scc1 L_ns1"); stamp(1); A("    s_waitcnt lgkmcnt(0)"); A("L_ns1:")
        for e12 in range(12):
            for u in range(U):
                i, e = divmod(e12, 4)
                k = kreg(b, u, i)+e; q = vQ+4*i+e
                if e12 == 0:
                    A("    v_dot2_f32_bf16 v%d, v%d, v%d, 0" % (vS+u, k, q))
                else:
                    A("    v_dot2c_f32_bf16 v%d, v%d, v%d" % (vS+u, k, q))
            if e12 == 0: A("    s_nop %d" % max(0, 3-U))
        if DYN:
            A("    s_waitcnt lgkmcnt(0)")
            A("    v_readfirstlane_b32 s13, v51")
            A("    s_mov_b64 exec, 1")
            A("    ds_add_rtn_u32 v51, v10, v11")
            A("    s_mov_b64 exec, -1")
            if GD:
                A("    s_cmp_ge_u32 s13, %d" % S)
                A("    s_cbranch_scc1 L_pool%d" % b)
            if HI:
                A("    s_lshr_b32 s14, s13, %d" % int(math.log2(NW)))
                A("    s_mul_i32 s14, s14, %d" % (NSPLIT*NW*U*3072))
                A("    s_and_b32 s12, s13, %d" % (NW-1))
                A("    s_mul_i32 s12, s12, %d" % (U*3072))
                A("    s_add_u32 s14, s14, s12")
            else:
                A("    s_mul_i32 s14, s13, %d" % (U*3072))
            if GD:
                A("    s_add_u32 s%d, s14, s34" % (60+b))
                A("L_poolback%d:" % b)
            else:
                A("    s_cmp_lt_u32 s13, %d" % NCHT)
                A("    s_cselect_b32 s%d, s14, %d" % (60+b, BIG))
        else:
            A("    s_cmp_lt_u32 s13, %d" % NCH)
            A("    s_cselect_b32 s%d, s14, %d" % (60+b, BIG))
            A("    s_add_u32 s13, s13, 1")
            A("    s_add_u32 s14, s14, %d" % cstride)
        ldK(b)
        for d in DPP8:
            for u in range(U):
                A("    v_add_f32_dpp v%d, v%d, v%d %s row_mask:0xf bank_mask:0xf" % (vS+u, vS+u, vS+u, d))
            if U < 3: A("    s_nop %d" % (2-U))
        if U == 1:
            A("    v_cmp_gt_f32 vcc, v%d, v4" % vS)
        else:
            if U == 2: A("    v_max_f32 v6, v%d, v%d" % (vS, vS+1))
            elif U == 4:
                A("    v_max3_f32 v6, v%d, v%d, v%d" % (vS, vS+1, vS+2)); A("    v_max_f32 v6, v6, v%d" % (vS+3))
            A("    v_cmp_gt_f32 vcc, v6, v4")
        A("    s_cbranch_vccnz L_resc%d" % b)
        A("L_back%d:" % b)
        A("    v_mul_f32 v7, s10, v4")
        for u in range(U):
            A("    v_fma_f32 v%d, v%d, s10, -v7" % (vS+u, vS+u))
        for u in range(U):
            A("    v_exp_f32 v%d, v%d" % (vS+u, vS+u))
        A("    s_nop 0")
        for u in range(U):
            A("    v_add_f32 v5, v5, v%d" % (vS+u))
            A("    v_cvt_pk_bf16_f32 v%d, v%d, v%d" % (vS+u, vS+u, vS+u))
        for u in range(U):
            a = vA + 4*(u % 2)
            for r in range(4):
                A("    v_and_b32 v%d, v%d, v%d" % (a+r, vS+u, vMK+r))
            if u == 0: A("    s_waitcnt vmcnt(%d)" % W)
            else: A("    s_nop 0")
            A("    s_nop 0")
            for i in range(3):
                r = vreg(b, u, i); acc = vACC+4*i
                A("    v_mfma_f32_16x16x32_bf16 v[%d:%d], v[%d:%d], v[%d:%d], v[%d:%d]" % (acc, acc+3, a, a+3, r, r+3, acc, acc+3))
        ldV(b)
    A("    s_branch L_loop")
    for b in range(NB):
        A("L_resc%d:" % b)
        if U == 1: A("    v_max_f32 v6, v%d, v4" % vS)
        else: A("    v_max_f32 v6, v6, v4")
        A("    s_nop 1")
        A("    v_max_f32_dpp v6, v6, v6 row_ror:8 row_mask:0xf bank_mask:0xf")
        A("    s_nop 1")
        A("    v_max_f32_dpp v6, v6, v6 row_bcast:15 row_mask:0xa bank_mask:0xf")
        A("    s_nop 1")
        A("    v_max_f32_dpp v6, v6, v6 row_bcast:31 row_mask:0xc bank_mask:0xf")
        A("    s_nop 1")
        A("    v_readlane_b32 s11, v6, 63")
        A("    s_nop 1")
        A("    v_sub_f32 v7, v4, s11" if False else "    v_subrev_f32 v7, s11, v4")
        A("    v_mul_f32 v7, s10, v7")
        A("    v_exp_f32 v7, v7")
        A("    v_mov_b32 v4, s11")
        A("    s_nop 0")
        A("    v_mul_f32 v5, v5, v7")
        for r in range(12): A("    v_mul_f32 v%d, v%d, v7" % (vACC+r, vACC+r))
        A("    s_nop 1")
        A("    s_branch L_back%d" % b)
    if GD:
        for b in range(NB):
            A("L_pool%d:" % b)
            A("    s_sub_u32 s12, s13, %d" % S)
            A("    s_mov_b32 s%d, %d" % (60+b, BIG))
            A("    s_cmp_ge_u32 s12, %d" % NT)
            A("    s_cbranch_scc1 L_poolback%d" % b)
            A("    s_lshl_b32 s12, s12, 2")
            A("    v_mov_b32 v6, s12")
            A("L_spin%d:" % b)
            A("    ds_read_b32 v7, v6 offset:1280")
            A("    s_waitcnt lgkmcnt(0)")
            A("    v_readfirstlane_b32 s12, v7")
            A("    s_nop 0")
            A("    s_mov_b32 s%d, s12" % (60+b))
            A("    s_cmp_lg_u32 s12, -1")
            A("    s_cbranch_scc1 L_poolback%d" % b)
            A("    s_sleep 1")
            A("    s_branch L_spin%d" % b)
        A("L_claimer:")
        A("    s_mov_b32 s40, s30")
        A("    s_mov_b32 s41, s31")
        A("    s_mov_b32 s42, 256")
        A("    s_lshl_b32 s12, s5, 3")
        A("    v_mov_b32 v9, s12")
        A("    v_mov_b32 v10, 1152")
        A("    v_mul_u32_u24 v11, 3072, v0             ; lane*3072")
        A("    v_lshlrev_b32 v12, 2, v0                ; lane*4")
        A("    s_mov_b32 s13, 0                        ; filled")
        A("L_cl_loop:")
        A("    ds_read_b32 v7, v10")
        A("    s_waitcnt lgkmcnt(0)")
        A("    v_readfirstlane_b32 s12, v7")
        A("    s_add_u32 s12, s12, %d" % LOOK)
        A("    s_add_u32 s14, s13, %d" % S)
        A("    s_cmp_gt_u32 s12, s14")
        A("    s_cbranch_scc1 L_cl_claim")
        A("    s_sleep %d" % CSL)
        A("    s_branch L_cl_loop")
        A("L_cl_claim:")
        A("    v_mov_b32 v17, 1")
        A("    s_mov_b64 exec, 1")
        A("    buffer_atomic_add v17, v9, s[40:43], 0 offen sc0")
        A("    s_waitcnt vmcnt(0)")
        A("    v_readfirstlane_b32 s12, v17")
        A("    s_mov_b64 exec, -1")
        A("    s_cmp_ge_u32 s12, %d" % NBLK)
        A("    s_cbranch_scc1 L_cl_fin")
        A("    s_mul_i32 s12, s12, %d" % (CB*3072))
        A("    s_add_u32 s12, s12, %d" % (POOL0*3072))
        A("    v_add_u32 v7, s12, v11")
        A("    s_lshl_b32 s14, s13, 2")
        A("    v_add_u32 v8, s14, v12")
        A("    s_mov_b64 exec, %d" % ((1 << CB)-1) if CB <= 6 else "    s_mov_b64 exec, 0x%x" % ((1 << CB)-1))
        A("    ds_write_b32 v8, v7 offset:1280")
        A("    s_mov_b64 exec, -1")
        A("    s_add_u32 s13, s13, %d" % CB)
        A("    s_branch L_cl_loop")
        A("L_cl_fin:")
        A("    v_mov_b32 v7, %d" % BIG)
        for q in range(NT//64):
            A("    v_add_u32 v8, %d, v0" % (q*64))
            A("    v_cmp_le_u32 vcc, s13, v8")
            A("    s_and_saveexec_b64 s[14:15], vcc")
            A("    v_lshlrev_b32 v8, 2, v8")
            A("    ds_write_b32 v8, v7 offset:1280")
            A("    s_mov_b64 exec, s[14:15]")
        A("    s_waitcnt lgkmcnt(0)")
        A("    s_endpgm")
    A("L_done:")
    A("    s_waitcnt vmcnt(0) lgkmcnt(0)")
    stamp(2)
    if TG:
        A("    s_mov_b32 s40, s30")
        A("    s_mov_b32 s41, s31")
        A("    s_mov_b32 s42, 256")
        A("    s_lshl_b32 s12, s5, 3")
        A("    v_mov_b32 v20, s12")
        if TG == 1:
            A("    v_mov_b32 v21, 0")
            A("    s_cmp_lg_u32 s4, 0")
            A("    s_cbranch_scc1 L_nocnt")
            A("    s_cmp_lg_u32 s6, %d" % CS)
            A("    s_cbranch_scc1 L_nocnt")
            A("    buffer_load_dword v21, v20, s[40:43], 0 offen sc1")
            A("L_nocnt:")
    A("    v_mul_f32 v4, s10, v4")
    A("    v_add_f32_dpp v5, v5, v5 row_ror:8 row_mask:0xf bank_mask:0xf")
    A("    v_bfe_u32 v6, v0, 4, 1                  ; g'%2")
    A("    v_and_b32 v8, 7, v0                     ; c")
    A("    v_add_f32_dpp v5, v5, v5 row_bcast:15 row_mask:0xa bank_mask:0xf")
    A("    v_lshlrev_b32 v6, 4, v6")
    A("    v_lshl_add_u32 v6, v8, 5, v6            ; c*32 + (g'%2)*16")
    A("    v_add_f32_dpp v5, v5, v5 row_bcast:31 row_mask:0xc bank_mask:0xf")
    A("    v_lshrrev_b32 v8, 5, v0                 ; h")
    A("    s_movk_i32 s12, 768")
    A("    v_mad_u32_u24 v6, v8, s12, v6")
    A("    s_mul_i32 s12, s4, 1536")
    A("    s_add_u32 s12, s12, 2048")
    A("    v_add_u32 v6, s12, v6")
    A("    v_readlane_b32 s11, v5, 63")
    A("    s_lshl_b32 s12, s4, 3")
    A("    s_add_u32 s12, s12, 1024")
    A("    v_mov_b32 v8, s12")
    A("    v_mov_b32 v5, s11")
    A("    s_mov_b32 exec_lo, 0x00ff00ff")
    A("    s_mov_b32 exec_hi, 0xff00ff00")
    for i in range(3):
        A("    ds_write_b128 v6, v[%d:%d] offset:%d" % (vACC+4*i, vACC+4*i+3, i*256))
    A("    ds_write_b64 v8, v[4:5]")
    A("    s_mov_b64 exec, -1")
    A("    s_waitcnt lgkmcnt(0)")
    A("    s_barrier")
    A("    s_cmp_lg_u32 s4, 0")
    A("    s_cbranch_scc1 L_end")
    stamp(3)
    A("    v_and_b32 v6, %d, v0" % (NW-1))
    A("    v_lshlrev_b32 v6, 3, v6")
    A("    v_lshlrev_b32 v8, 4, v0                 ; t*16")
    A("    ds_read_b64 v[10:11], v6 offset:1024")
    vM = 64 if NV >= 64+8*NW else 24
    NV = max(NV, vM+8*NW)
    for w in range(2*NW):
        A("    ds_read_b128 v[%d:%d], v8 offset:%d" % (vM+4*w, vM+4*w+3, 2048+w*768))
    msteps = list(DPP8[:min(3, int(math.log2(NW)))])
    if NW == 16: msteps.append("row_ror:8")
    A("    s_waitcnt lgkmcnt(%d)" % min(15, 2*NW))
    A("    v_mov_b32 v7, v10")
    for d in msteps:
        A("    s_nop 1")
        A("    v_max_f32_dpp v7, v7, v7 %s row_mask:0xf bank_mask:0xf" % d)
    A("    v_sub_f32 v10, v10, v7")
    A("    v_exp_f32 v10, v10")
    A("    s_nop 0")
    A("    v_mul_f32 v16, v10, v11")
    for d in msteps:
        A("    s_nop 1")
        A("    v_add_f32_dpp v16, v16, v16 %s row_mask:0xf bank_mask:0xf" % d)
    for w in range(NW):
        A("    v_readlane_b32 s%d, v10, %d" % (64+w, w))
    if NW < 4: A("    s_nop 1")
    A("    s_waitcnt lgkmcnt(0)")
    for r in range(4):
        A("    v_mul_f32 v%d, s64, v%d" % (12+r, vM+r))
    for w in range(1, 2*NW):
        for r in range(4):
            A("    v_fma_f32 v%d, s%d, v%d, v%d" % (12+r, 64+w//2, vM+4*w+r, 12+r))
    stamp(5)
    if TG:
        A("    s_mov_b32 s36, s32")
        A("    s_mov_b32 s37, s33")
        A("    s_mov_b32 s38, %d" % (NWG*2048))
        A("    s_mov_b32 s44, s28")
        A("    s_mov_b32 s45, s29")
        A("    s_lshl_b32 s12, s2, 11")
        A("    v_lshlrev_b32 v8, 4, v0")
        A("    v_add_u32 v8, s12, v8")
        A("    s_waitcnt lgkmcnt(0)")
        A("    s_mov_b32 exec_lo, 0")
        A("    s_mov_b32 exec_hi, 0x10000              ; lane 48")
        A("    v_mov_b32 v12, v7")
        A("    v_mov_b32 v13, v16")
        A("    s_mov_b32 exec_lo, -1")
        A("    s_mov_b32 exec_hi, 0x1ffff")
        for j in range(4):
            A("    v_mov_b32 v%d, v%d" % (28+2*j, 12+j))
            A("    v_mov_b32 v%d, 1.0                  ; tag" % (29+2*j))
        A("    buffer_store_dwordx4 v[28:31], v8, s[36:39], 0 offen sc1")
        A("    s_mov_b32 exec_hi, 0xffff")
        A("    buffer_store_dwordx4 v[32:35], v8, s[36:39], 0 offen offset:1024 sc1")
        if TG == 2:
            A("    v_mov_b32 v21, 1")
            A("    s_mov_b64 exec, 1")
            A("    buffer_atomic_add v21, v20, s[40:43], 0 offen sc0")
        A("    s_mov_b32 exec_lo, -1")
        A("    s_mov_b32 exec_hi, 0xffff               ; lanes 0..47")
        A("    s_lshl_b32 s12, s5, 14                  ; head*8*2048")
        A("    v_lshlrev_b32 v8, 4, v0")
        A("    v_add_u32 v8, s12, v8")
        A("    v_and_b32 v9, 7, v0")
        A("    v_lshlrev_b32 v9, 11, v9")
        A("    v_add_u32 v9, s12, v9")
        for q in range(1, 8): A("    s_mov_b32 s%d, %d" % (64+q, q*2048))
        if TG == 2:
            A("    s_waitcnt vmcnt(0)")
            A("    v_readfirstlane_b32 s12, v21")
            stamp(6)
            if STAMP: A("    s_mov_b64 exec, -1")
            A("    s_cmp_lg_u32 s12, 7")
            A("    s_cbranch_scc1 %s" % ("L_stamp" if STAMP else "L_end"))
            if STAMP:
                A("    s_mov_b32 exec_hi, 0xffff")
        else:
            stamp(6)
            if STAMP: A("    s_mov_b64 exec, -1")
            A("    s_cmp_lg_u32 s6, %d" % CS)
            A("    s_cbranch_scc1 %s" % ("L_stamp" if STAMP else "L_end"))
            if STAMP:
                A("    s_mov_b32 exec_hi, 0xffff")
        if TG == 1:
            A("    s_waitcnt vmcnt(2)")
            A("L_cspin:")
            A("    v_readfirstlane_b32 s12, v21")
            A("    s_cmp_eq_u32 s12, 8")
            A("    s_cbranch_scc1 L_poll")
            A("    buffer_load_dword v21, v20, s[40:43], 0 offen sc1")
            A("    s_waitcnt vmcnt(0)")
            A("    s_branch L_cspin")
        A("L_poll:")
        A("    buffer_load_dwordx4 v[10:13], v9, s[36:39], 0 offen offset:768 sc1")
        vF = 24
        for q in range(8):
            so = "0" if q == 0 else "s%d" % (64+q)
            A("    buffer_load_dwordx4 v[%d:%d], v8, s[36:39], %s offen sc1" % (vF+8*q, vF+8*q+3, so))
            A("    buffer_load_dwordx4 v[%d:%d], v8, s[36:39], %s offen offset:1024 sc1" % (vF+8*q+4, vF+8*q+7, so))
        A("    s_waitcnt vmcnt(16)")
        A("    v_min_u32 v16, v11, v13")
        A("    v_mov_b32 v11, v12")
        A("    v_mov_b32 v4, v10")
        for d in DPP8:
            A("    s_nop 1")
            A("    v_max_f32_dpp v4, v4, v4 %s row_mask:0xf bank_mask:0xf" % d)
        A("    v_sub_f32 v10, v10, v4")
        A("    v_exp_f32 v10, v10                      ; w_s")
        A("    s_nop 0")
        A("    v_mul_f32 v11, v10, v11                 ; w_s*L_s")
        for d in DPP8:
            A("    s_nop 1")
            A("    v_add_f32_dpp v11, v11, v11 %s row_mask:0xf bank_mask:0xf" % d)
        A("    v_rcp_f32 v11, v11")
        A("    s_nop 0")
        A("    v_mul_f32 v10, v10, v11                 ; w_s / L")
        for q in range(16):
            A("    s_waitcnt vmcnt(%d)" % (15-q))
            A("    v_min3_u32 v16, v16, v%d, v%d" % (vF+4*q+1, vF+4*q+3))
        A("    v_cmp_eq_u32 vcc, 0, v16")
        A("    s_cbranch_vccnz L_poll")
        for q in range(8):
            A("    v_readlane_b32 s%d, v10, %d" % (72+q, q))
        A("    s_nop 1")
        src = lambda q, r: vF + 8*q + (0, 2, 4, 6)[r]
        for r in range(4):
            A("    v_mul_f32 v%d, s72, v%d" % (12+r, src(0, r)))
        for q in range(1, 8):
            for r in range(4):
                A("    v_fma_f32 v%d, s%d, v%d, v%d" % (12+r, 72+q, src(q, r), 12+r))
    else:
        A("    s_mov_b32 s36, s32")
        A("    s_mov_b32 s37, s33")
        A("    s_mov_b32 s38, %d" % (NWG*1024))
        A("    s_mov_b32 s40, s30")
        A("    s_mov_b32 s41, s31")
        A("    s_mov_b32 s42, 256")
        A("    s_mov_b32 s44, s28")
        A("    s_mov_b32 s45, s29")
        A("    s_lshl_b32 s12, s2, 10")
        A("    v_lshlrev_b32 v8, 4, v0")
        A("    v_add_u32 v8, s12, v8")
        A("    s_lshl_b32 s12, s5, 3")
        if GD: A("    s_add_u32 s12, s12, 4")
        A("    v_mov_b32 v9, s12")
        A("    v_mov_b32 v17, 1")
        A("    s_waitcnt lgkmcnt(0)")
        A("    s_mov_b32 exec_lo, 0")
        A("    s_mov_b32 exec_hi, 0x10000              ; lane 48")
        A("    v_mov_b32 v12, v7")
        A("    v_mov_b32 v13, v16")
        A("    s_mov_b32 exec_lo, -1")
        A("    s_mov_b32 exec_hi, 0x1ffff")
        A("    buffer_store_dwordx4 v[12:15], v8, s[36:39], 0 offen sc1")
        A("    s_waitcnt vmcnt(0)")
        A("    s_mov_b64 exec, 1")
        A("    buffer_atomic_add v17, v9, s[40:43], 0 offen sc0")
        A("    s_waitcnt vmcnt(0)")
        A("    v_readfirstlane_b32 s12, v17")
        A("    s_mov_b64 exec, -1")
        stamp(6)
        A("    s_cmp_lg_u32 s12, %d" % (NSPLIT-1))
        A("    s_cbranch_scc1 %s" % ("L_stamp" if STAMP else "L_end"))
        A("    s_lshl_b32 s12, s5, %d                   ; head*NSPLIT*1024" % (10+int(math.log2(NSPLIT))))
        A("    v_lshlrev_b32 v8, 4, v0")
        A("    v_add_u32 v8, s12, v8")
        A("    v_and_b32 v9, %d, v0" % (NSPLIT-1))
        A("    v_lshlrev_b32 v9, 10, v9")
        A("    v_add_u32 v9, s12, v9")
        A("    buffer_load_dwordx2 v[10:11], v9, s[36:39], 0 offen offset:768 sc1")
        vF = 24
        for s in range(NSPLIT):
            if s == 0: A("    buffer_load_dwordx4 v[%d:%d], v8, s[36:39], 0 offen sc1" % (vF, vF+3))
            else: A("    buffer_load_dwordx4 v[%d:%d], v8, s[36:39], s%d offen sc1" % (vF+4*s, vF+4*s+3, 64+s))
            if s+1 < NSPLIT: A("    s_mov_b32 s%d, %d" % (64+s+1, (s+1)*1024))
        steps = list(DPP8)
        if NSPLIT >= 16: steps.append("row_ror:8")
        assert NSPLIT <= 16
        A("    s_waitcnt vmcnt(%d)" % NSPLIT)
        A("    v_mov_b32 v4, v10")
        for d in steps:
            A("    s_nop 1")
            A("    v_max_f32_dpp v4, v4, v4 %s row_mask:0xf bank_mask:0xf" % d)
        A("    v_sub_f32 v10, v10, v4")
        A("    v_exp_f32 v10, v10                      ; w_s")
        A("    s_nop 0")
        A("    v_mul_f32 v11, v10, v11                 ; w_s*L_s")
        for d in steps:
            A("    s_nop 1")
            A("    v_add_f32_dpp v11, v11, v11 %s row_mask:0xf bank_mask:0xf" % d)
        A("    v_rcp_f32 v11, v11")
        A("    s_nop 0")
        A("    v_mul_f32 v10, v10, v11                 ; w_s / L")
        A("    s_nop 0")
        for s in range(NSPLIT):
            A("    v_readlane_b32 s%d, v10, %d" % (64+s, s))
        A("    s_waitcnt vmcnt(0)")
        for r in range(4):
            A("    v_mul_f32 v%d, s64, v%d" % (12+r, vF+r))
        for s in range(1, NSPLIT):
            for r in range(4):
                A("    v_fma_f32 v%d, s%d, v%d, v%d" % (12+r, 64+s, vF+4*s+r, 12+r))
    A("    v_cvt_pk_bf16_f32 v12, v12, v13")
    A("    v_cvt_pk_bf16_f32 v13, v14, v15")
    A("    s_mul_i32 s12, s5, 384")
    A("    v_lshlrev_b32 v8, 3, v0")
    A("    v_add_u32 v8, s12, v8")
    A("    s_mov_b32 exec_lo, -1")
    A("    s_mov_b32 exec_hi, 0xffff               ; lanes 0..47")
    A(("    buffer_store_dwordx2 v[12:13], v8, s[44:47], 0 offen " + OF.replace("+", " ")).rstrip())
    if STAMP:
        A("    s_waitcnt vmcnt(0)")
        stamp(7)
        A("L_stamp:")
        A("    s_mov_b64 exec, -1")
        A("    s_waitcnt lgkmcnt(0)")
        A("    s_mov_b32 s38, 0x200000")
        A("    s_lshl_b32 s12, s2, 6")
        A("    s_add_u32 s12, s12, 0x100000")
        A("    v_mov_b32 v8, s12")
        for i in range(4):
            for e in range(4): A("    v_mov_b32 v%d, s%d" % (12+e, 84+4*i+e))
            A("    buffer_store_dwordx4 v[12:15], v8, s[36:39], 0 offen offset:%d" % (16*i))
            A("    s_nop 1")
    A("L_end:")
    A("    s_endpgm")
    NV = max(NV, vF+(8 if TG else 4)*NSPLIT)
    A('.section .rodata,"a"')
    A(".p2align 6")
    A(".amdhsa_kernel %s_kernel" % NAME)
    A("  .amdhsa_next_free_vgpr %d" % NV)
    A("  .amdhsa_next_free_sgpr 102")
    A("  .amdhsa_accum_offset %d" % ((NV+3)//4*4))
    A("  .amdhsa_group_segment_fixed_size 0")
    A("  .amdhsa_kernarg_size 72")
    A("  .amdhsa_user_sgpr_count 2")
    A("  .amdhsa_user_sgpr_kernarg_segment_ptr 1")
    A("  .amdhsa_system_sgpr_workgroup_id_x 1")
    A(".end_amdhsa_kernel")
    return "\n".join(o) + "\n"

if __name__ == "__main__":
    out = sys.argv[1]
    kw = {}
    for a in sys.argv[2:]:
        k, v = a.split("=")
        kw[k] = int(v) if v.lstrip("-").isdigit() else v
    open(out, "w").write(gen(**kw))
```
